```python
import torch

def _softmax(x, axis=-1):
    return torch.softmax(x, dim=axis)

def _gelu(x):
    return torch.nn.functional.gelu(x, approximate='tanh')

def _silu(x):
    return torch.nn.functional.silu(x)

def _sigmoid(x):
    return torch.sigmoid(x)

def _layernorm(x, axis=-1, eps=1e-05):
    m = x.mean(dim=axis, keepdim=True)
    v = x.var(dim=axis, keepdim=True, unbiased=False)
    return (x - m) / torch.sqrt(v + eps)

def _scatter_add(tgt, idx, src, axis=0):
    return tgt.clone().index_add_(axis, idx, src)

def _segment_sum(src, seg, n):
    out = torch.zeros((n,) + src.shape[1:], dtype=src.dtype)
    return out.index_add_(0, seg, src)

def _pad(x, pw):
    flat = tuple((v for pair in reversed(pw) for v in pair))
    return torch.nn.functional.pad(x, flat)
kernel_name = 'adaLN_cond__sliding_local_dilated__moe_arch_mod__prompt'

def setup_inputs():

    _w = lambda a: (lambda t: t.to(torch.bfloat16) if t.is_floating_point() else t)(torch.as_tensor(a))

    def _A_setup():
        B, S, D = (1, 2048, 640)
        return {'x': _w((lambda *s: torch.randn(*s, dtype=torch.bfloat16) * 0.05)(B, S, D)), 'wqkv': _w((lambda *s: torch.randn(*s, dtype=torch.bfloat16) * 0.05)(D, 3 * D)), 'wo': _w((lambda *s: torch.randn(*s, dtype=torch.bfloat16) * 0.05)(D, D))}
    _A_in = _A_setup()

    def _B_setup():
        B, S, D, F, C = (1, 2048, 640, 1728, 1)
        return {'x': _w((lambda *s: torch.randn(*s, dtype=torch.bfloat16) * 0.05)(B, S, D)), 'w_r': _w((lambda *s: torch.randn(*s, dtype=torch.bfloat16) * 3.2)(D)), 'w_gate': _w((lambda *s: torch.randn(*s, dtype=torch.bfloat16) * 0.1)(D, F)), 'w_up': _w((lambda *s: torch.randn(*s, dtype=torch.bfloat16) * 0.1)(D, F)), 'w_down': _w((lambda *s: torch.randn(*s, dtype=torch.bfloat16) * 0.1)(F, D))}
    _B_in = _B_setup()
    return {'A_x': _A_in['x'], 'A_wqkv': _A_in['wqkv'], 'A_wo': _A_in['wo'], 'B_x': _B_in['x'], 'B_w_r': _B_in['w_r'], 'B_w_gate': _B_in['w_gate'], 'B_w_up': _B_in['w_up'], 'B_w_down': _B_in['w_down'], 'c': _w((lambda *s: torch.randn(*s, dtype=torch.bfloat16) * 0.1)(1, 640) * 8.0), 'w_mod': _w((lambda *s: torch.randn(*s, dtype=torch.bfloat16) * 0.1)(640, 6 * 640) * 640 ** (-0.5) * 8.0)}

def reference(A_x, A_wqkv, A_wo, B_x, B_w_r, B_w_gate, B_w_up, B_w_down, c, w_mod):

    def _A_ref(x, wqkv, wo):
        B, S, D = x.shape
        H = 32
        Dh = D // H
        W, dil = (8, 2)
        qkv = (lambda x, *d: x.permute(*d))((x @ wqkv).reshape(B, S, 3, H, Dh), 2, 0, 3, 1, 4)
        q, k, v = (qkv[0], qkv[1], qkv[2])
        scale = Dh ** (-0.5)
        pos = torch.arange(S)
        off = torch.arange(W) * dil
        idx = pos[:, None] - off[None, :]
        mask = idx >= 0
        idx_c = torch.where(mask, idx, 0).reshape(-1)
        kg = k[:, :, idx_c, :].reshape(B, H, S, W, Dh)
        vg = v[:, :, idx_c, :].reshape(B, H, S, W, Dh)
        logits = torch.einsum('bhsd,bhswd->bhsw', q, kg) * scale
        logits = torch.where(mask[None, None, :, :], logits, -1000000000.0)
        attn = _softmax(logits, axis=-1)
        o = torch.einsum('bhsw,bhswd->bhsd', attn, vg)
        return (lambda x, *d: x.permute(*d))(o, 0, 2, 1, 3).reshape(B, S, D) @ wo

    def _B_ref(x, w_r, w_gate, w_up, w_down):
        B, S, D = x.shape
        C = 1
        r = x @ w_r
        idx = torch.argsort(-r, axis=-1)[:, :C]
        idx_e = (lambda x, n, axis: torch.repeat_interleave(x, n, dim=axis))(idx.reshape(B, C, 1), D, axis=2)
        x_sel = (lambda x, i, axis: torch.take_along_dim(x, i, dim=axis))(x, idx_e, axis=1)
        g = _silu(x_sel @ w_gate)
        u = x_sel @ w_up
        y = g * u @ w_down
        r_sel = _sigmoid((lambda x, i, axis: torch.take_along_dim(x, i, dim=axis))(r, idx, axis=1))
        y = y * r_sel.reshape(B, C, 1)
        b_off = (torch.arange(B) * S).reshape(B, 1)
        flat_idx = (idx + b_off).reshape(B * C)
        zero = (x * 0.0).reshape(B * S, D)
        upd = _scatter_add(zero, flat_idx, y.reshape(B * C, D), axis=0)
        return x + upd.reshape(B, S, D)
    x = A_x
    mod = (_silu(c) @ w_mod).reshape(c.shape[0], 6, 1, -1)
    sa, ca, ga, sb, cb, gb = (mod[:, 0].clone(), mod[:, 1].clone(), mod[:, 2].clone(), mod[:, 3].clone(), mod[:, 4].clone(), mod[:, 5].clone())
    h = _layernorm(x, axis=-1) * (1 + ca) + sa
    x = x + ga * _A_ref(h, A_wqkv, A_wo)
    h = _layernorm(x, axis=-1) * (1 + cb) + sb
    x = x + gb * _B_ref(h, B_w_r, B_w_gate, B_w_up, B_w_down)
    return x
```

```python
import sys
NAME = "adaLN_cond__sliding_local_dilated__moe_arch_mod__prompt"
HDR = open("/code/" + NAME + ".s.ref").read().split("; Override launch")[0]

MOD, R, ACT, H, WT, WOT, QKV, O, AT, H2, X1 = 0, 0x10000, 0x20000, 0x100000, 0x400000, 0x700000, 0x800000, 0x1000000, 0x1300000, 0x1900000, 0x1C00000
SZ = dict(x=2621440, wqkv=2457600, wo=819200, wr=1280, wg=2211840, wu=2211840, wd=2211840, c=1280, wmod=4915200, out=2621440, ws=0x4000000)
KOFF = dict(x=0, wqkv=8, wo=16, wr=32, wg=40, wu=48, wd=56, c=64, wmod=72, out=80, dbg=88, ws=96)
kernels = []

class K:
    def __init__(self, label, grid, block=256, lds=0, vgpr=128):
        self.label, self.grid, self.block, self.lds, self.vgpr = label, grid, block, lds, vgpr
        self.l = []; kernels.append(self)
        self(f"s_cmp_ge_u32 s2, {grid}\ns_cbranch_scc1 {label}_end")
    def __call__(self, s):
        self.l.extend(s.replace("@", self.label + "_").split("\n"))
    def srds(self, **m):
        for n, s in m.items(): self(f"s_load_dwordx2 s[{s}:{s+1}], s[0:1], {KOFF[n]}")
        self("s_waitcnt lgkmcnt(0)")
        for n, s in m.items(): self(f"s_mov_b32 s{s+2}, {SZ[n]}\ns_mov_b32 s{s+3}, 0x20000")
    def wave_sum(self, v, t):
        for m in (0x041F, 0x081F, 0x101F, 0x201F, 0x401F):
            self(f"ds_swizzle_b32 v{t}, v{v} offset:{m}\ns_waitcnt lgkmcnt(0)\nv_add_f32 v{v}, v{v}, v{t}")
        self(f"v_mov_b32 v{t}, v{v}\ns_nop 1\nv_permlane32_swap_b32 v{v}, v{t}\ns_nop 1\nv_add_f32 v{v}, v{v}, v{t}")
    def rbf(self, v):
        self(f"v_cvt_pk_bf16_f32 v{v}, v{v}, v{v}\nv_lshlrev_b32 v{v}, 16, v{v}")

def silu(k, v, t):
    k(f"v_mul_f32 v{t}, 0xbfb8aa3b, v{v}\nv_exp_f32 v{t}, v{t}\ns_nop 0\nv_add_f32 v{t}, 1.0, v{t}\nv_rcp_f32 v{t}, v{t}\ns_nop 0\nv_mul_f32 v{v}, v{v}, v{t}")

def gemv(k, srd, rowbytes, nk, acc):
    per = nk // 8
    k(f"v_and_b32 v1, 31, v0\nv_lshrrev_b32 v2, 5, v0\ns_lshl_b32 s3, s2, 7\nv_mul_u32_u24 v3, {per*rowbytes}, v2\nv_lshl_add_u32 v3, v1, 2, v3\nv_add_u32 v3, s3, v3")
    k(f"v_mul_u32_u24 v4, {per*4}, v2\nv_mov_b32 v{acc}, 0\nv_mov_b32 v{acc+1}, 0\ns_mov_b32 s40, 0\ns_mov_b32 s41, 0")
    lab = f"@g{acc}"
    k(f"{lab}:")
    for j in range(8):
        k(f"buffer_load_dword v{20+j}, v3, s[{srd}:{srd+3}], s41 offen\ns_add_u32 s41, s41, {rowbytes}")
    k("ds_read_b128 v[32:35], v4\nds_read_b128 v[36:39], v4 offset:16\nv_add_u32 v4, 32, v4\ns_waitcnt vmcnt(0) lgkmcnt(0)")
    for j in range(8):
        k(f"v_lshlrev_b32 v5, 16, v{20+j}\nv_and_b32 v6, 0xffff0000, v{20+j}\nv_fmac_f32 v{acc}, v5, v{32+j}\nv_fmac_f32 v{acc+1}, v6, v{32+j}")
    k(f"s_add_u32 s40, s40, 8\ns_cmp_lt_u32 s40, {per}\ns_cbranch_scc1 {lab}")
    k(f"v_lshlrev_b32 v5, 3, v0\ns_barrier\nds_write_b64 v5, v[{acc}:{acc+1}] offset:8192\ns_waitcnt lgkmcnt(0)\ns_barrier")
    k(f"v_and_b32 v5, 63, v0\nv_lshlrev_b32 v5, 2, v5\nv_mov_b32 v{acc}, 0")
    for q in range(8):
        k(f"ds_read_b32 v6, v5 offset:{8192+256*q}\ns_waitcnt lgkmcnt(0)\nv_add_f32 v{acc}, v{acc}, v6")

k = K("mod_kernel", 60, lds=16384)
k.srds(c=4, wmod=8, ws=12)
for j in range(3):
    k(f"v_add_u32 v1, {256*j}, v0\nv_lshlrev_b32 v2, 1, v1\nbuffer_load_ushort v3, v2, s[4:7], 0 offen\ns_waitcnt vmcnt(0)\nv_lshlrev_b32 v3, 16, v3")
    silu(k, 3, 4); k.rbf(3)
    k("v_lshlrev_b32 v2, 2, v1\nds_write_b32 v2, v3")
k("s_waitcnt lgkmcnt(0)\ns_barrier")
gemv(k, 8, 7680, 640, 10)
k.rbf(10)
k("s_mul_hi_u32 s3, s2, 0x1999999a\ns_cmp_eq_u32 s3, 1\ns_cbranch_scc1 @add1\ns_cmp_eq_u32 s3, 4\ns_cbranch_scc0 @noadd\n@add1:\nv_add_f32 v10, 1.0, v10")
k.rbf(10)
k(f"@noadd:\ns_lshl_b32 s3, s2, 8\nbuffer_store_dword v10, v5, s[12:15], s3 offen offset:{MOD}")

def transp(label, src, N, dst):
    k = K(label, N*80//256)
    k.srds(**{src: 4, 'ws': 8})
    magic = (1 << 32)//N + 1
    k(f"s_lshl_b32 s3, s2, 8\nv_add_u32 v1, s3, v0\ns_mov_b32 s3, {magic}\nv_mul_hi_u32 v2, v1, s3\nv_mul_u32_u24 v3, {N}, v2\nv_sub_u32 v3, v1, v3")
    k(f"v_mul_u32_u24 v4, {8*N*2}, v2\nv_lshl_add_u32 v4, v3, 1, v4\ns_mov_b32 s3, 0")
    for j in range(8):
        k(f"buffer_load_ushort v{10+j}, v4, s[4:7], s3 offen\ns_add_u32 s3, s3, {N*2}")
    k("s_waitcnt vmcnt(0)")
    for j in range(4): k(f"v_lshl_or_b32 v{20+j}, v{11+2*j}, 16, v{10+2*j}")
    k(f"v_mul_u32_u24 v4, 1280, v3\nv_lshl_add_u32 v4, v2, 4, v4\ns_mov_b32 s3, {dst}\nbuffer_store_dwordx4 v[20:23], v4, s[8:11], s3 offen")
transp("tw_kernel", "wqkv", 1920, WT)
transp("two_kernel", "wo", 640, WOT)

def ln(k, b):
    k(f"v_mov_b32 v6, 0")
    for j in range(10): k(f"v_add_f32 v6, v6, v{b+j}")
    k.wave_sum(6, 7)
    k("v_mul_f32 v6, 0x3acccccd, v6\nv_mov_b32 v8, 0")
    for j in range(10): k(f"v_sub_f32 v{b+j}, v{b+j}, v6\nv_fmac_f32 v8, v{b+j}, v{b+j}")
    k.wave_sum(8, 7)
    k("v_mov_b32 v7, 0x3727c5ac\nv_fmac_f32 v7, 0x3acccccd, v8\nv_rsq_f32 v7, v7\ns_nop 0")
    for j in range(10): k(f"v_mul_f32 v{b+j}, v{b+j}, v7")
def rowsetup(k):
    k("v_lshrrev_b32 v1, 6, v0\ns_lshl_b32 s3, s2, 2\nv_add_u32 v1, s3, v1\nv_and_b32 v2, 63, v0\nv_mul_u32_u24 v3, 1280, v1\nv_lshl_add_u32 v3, v2, 2, v3\nv_lshlrev_b32 v4, 3, v2\nv_lshlrev_b32 v5, 1, v3")
def ldbf(k, srd, soff, voff, b, t):
    for j in range(5): k(f"buffer_load_dword v{t+j}, v{voff}, s[{srd}:{srd+3}], {soff} offen offset:{256*j}")
    k("s_waitcnt vmcnt(0)")
    for j in range(5): k(f"v_lshlrev_b32 v{b+2*j}, 16, v{t+j}\nv_and_b32 v{b+2*j+1}, 0xffff0000, v{t+j}")
def ldmod(k, srd, idx, b):
    k(f"s_mov_b32 s3, {MOD+idx*2560}")
    for j in range(5): k(f"buffer_load_dwordx2 v[{b+2*j}:{b+2*j+1}], v4, s[{srd}:{srd+3}], s3 offen offset:{512*j}")
    k("s_waitcnt vmcnt(0)")
def stbf(k, srd, soff, voff, b, t):
    for j in range(5): k(f"v_cvt_pk_bf16_f32 v{t+j}, v{b+2*j}, v{b+2*j+1}\nbuffer_store_dword v{t+j}, v{voff}, s[{srd}:{srd+3}], {soff} offen offset:{256*j}")

k = K("ln1_kernel", 512)
k.srds(x=4, ws=8)
rowsetup(k); ldbf(k, 4, 0, 3, 20, 10); ln(k, 20)
ldmod(k, 8, 0, 30); ldmod(k, 8, 1, 40)
for j in range(10): k(f"v_fma_f32 v{20+j}, v{20+j}, v{40+j}, v{30+j}")
k(f"s_mov_b32 s3, {H}"); stbf(k, 8, "s3", 3, 20, 10)

def gemm(label, A, Bt, C, N, f32out):
    nb = N//64
    k = K(label, 32*nb)
    k.srds(ws=4)
    k("s_and_b32 s8, s2, 31\ns_lshr_b32 s9, s2, 5\nv_lshrrev_b32 v1, 6, v0\nv_and_b32 v2, 1, v1\nv_lshrrev_b32 v3, 1, v1")
    k("s_lshl_b32 s8, s8, 6\ns_lshl_b32 s9, s9, 6\nv_lshl_add_u32 v2, v2, 5, s8\nv_lshl_add_u32 v3, v3, 5, s9")
    k("v_and_b32 v4, 15, v0\nv_bfe_u32 v5, v0, 4, 2")
    k("v_add_u32 v6, v2, v4\nv_mul_u32_u24 v6, 1280, v6\nv_lshl_add_u32 v6, v5, 4, v6\nv_add_u32 v7, 20480, v6")
    k("v_add_u32 v8, v3, v4\nv_mul_u32_u24 v8, 1280, v8\nv_lshl_add_u32 v8, v5, 4, v8\nv_add_u32 v9, 20480, v8")
    for i in range(16): k(f"v_mov_b32 v{40+i}, 0")
    k(f"s_mov_b32 s10, {A}\ns_mov_b32 s11, {Bt}\ns_mov_b32 s12, 0\n@loop:")
    for u in range(2):
        b = 60 + 16*u
        k(f"buffer_load_dwordx4 v[{b}:{b+3}], v6, s[4:7], s10 offen offset:{64*u}\nbuffer_load_dwordx4 v[{b+4}:{b+7}], v7, s[4:7], s10 offen offset:{64*u}")
        k(f"buffer_load_dwordx4 v[{b+8}:{b+11}], v8, s[4:7], s11 offen offset:{64*u}\nbuffer_load_dwordx4 v[{b+12}:{b+15}], v9, s[4:7], s11 offen offset:{64*u}")
    for u in range(2):
        b = 60 + 16*u
        k(f"s_waitcnt vmcnt({4-4*u})")
        for mi in range(2):
            for ni in range(2):
                c = 40 + 8*mi + 4*ni
                k(f"v_mfma_f32_16x16x32_bf16 v[{c}:{c+3}], v[{b+8+4*ni}:{b+11+4*ni}], v[{b+4*mi}:{b+3+4*mi}], v[{c}:{c+3}]")
    k("s_add_u32 s10, s10, 128\ns_add_u32 s11, s11, 128\ns_add_u32 s12, s12, 1\ns_cmp_lt_u32 s12, 10\ns_cbranch_scc1 @loop\ns_nop 7\ns_nop 7")
    eb = 4 if f32out else 2
    k(f"v_add_u32 v6, v2, v4\nv_mul_u32_u24 v6, {N*eb}, v6\nv_lshl_add_u32 v7, v5, 2, v3\nv_mul_u32_u24 v7, {eb}, v7\nv_add_u32 v6, v6, v7\ns_mov_b32 s10, {C}\ns_mov_b32 s11, {C+16*N*eb}")
    for mi in range(2):
        for ni in range(2):
            c = 40 + 8*mi + 4*ni
            if f32out:
                k(f"buffer_store_dwordx4 v[{c}:{c+3}], v6, s[4:7], s{10+mi} offen offset:{64*ni}")
            else:
                k(f"v_cvt_pk_bf16_f32 v{c}, v{c}, v{c+1}\nv_cvt_pk_bf16_f32 v{c+1}, v{c+2}, v{c+3}\nbuffer_store_dwordx2 v[{c}:{c+1}], v6, s[4:7], s{10+mi} offen offset:{32*ni}")
gemm("qkv_kernel", H, WT, QKV, 1920, False)

k = K("attn_kernel", 256, vgpr=256)
k.srds(ws=4)
k("v_and_b32 v1, 31, v0\nv_lshrrev_b32 v2, 5, v0\ns_lshl_b32 s3, s2, 3\nv_add_u32 v2, s3, v2\nv_mul_u32_u24 v3, 40, v1")
k(f"v_mul_u32_u24 v4, 3840, v2\nv_add_u32 v4, v4, v3\ns_mov_b32 s8, {QKV}")
for i in range(5): k(f"buffer_load_dwordx2 v[{10+2*i}:{11+2*i}], v4, s[4:7], s8 offen offset:{8*i}")
for w in range(8):
    k(f"v_subrev_u32 v5, {2*w}, v2\nv_max_i32 v5, 0, v5\nv_mul_u32_u24 v5, 3840, v5\nv_add_u32 v5, v5, v3")
    for i in range(5):
        k(f"buffer_load_dwordx2 v[{60+10*w+2*i}:{61+10*w+2*i}], v5, s[4:7], s8 offen offset:{1280+8*i}")
        k(f"buffer_load_dwordx2 v[{140+10*w+2*i}:{141+10*w+2*i}], v5, s[4:7], s8 offen offset:{2560+8*i}")
    k("s_waitcnt vmcnt(40)")
k("s_waitcnt vmcnt(0)")
for i in range(10): k(f"v_lshlrev_b32 v{20+2*i}, 16, v{10+i}\nv_and_b32 v{21+2*i}, 0xffff0000, v{10+i}")
for w in range(8):
    k(f"v_mov_b32 v{40+w}, 0")
    for i in range(10):
        k(f"v_lshlrev_b32 v5, 16, v{60+10*w+i}\nv_and_b32 v6, 0xffff0000, v{60+10*w+i}\nv_fmac_f32 v{40+w}, v5, v{20+2*i}\nv_fmac_f32 v{40+w}, v6, v{21+2*i}")
    k(f"v_mul_f32 v{40+w}, 0x3ea52b5c, v{40+w}\nv_mov_b32 v5, 0xceac0000\nv_cmp_le_u32 vcc, {2*w}, v2\ns_nop 1\nv_cndmask_b32 v{40+w}, v5, v{40+w}, vcc")
k("v_max3_f32 v5, v40, v41, v42\nv_max3_f32 v5, v5, v43, v44\nv_max3_f32 v5, v5, v45, v46\nv_max_f32 v5, v5, v47\nv_mov_b32 v6, 0")
for w in range(8): k(f"v_sub_f32 v{40+w}, v{40+w}, v5\nv_exp_f32 v{40+w}, v{40+w}\ns_nop 0\nv_add_f32 v6, v6, v{40+w}")
k("v_rcp_f32 v6, v6\ns_nop 0")
for i in range(20): k(f"v_mov_b32 v{20+i}, 0")
for w in range(8):
    k(f"v_mul_f32 v{40+w}, v{40+w}, v6")
    for i in range(10):
        k(f"v_lshlrev_b32 v5, 16, v{140+10*w+i}\nv_and_b32 v7, 0xffff0000, v{140+10*w+i}\nv_fmac_f32 v{20+2*i}, v5, v{40+w}\nv_fmac_f32 v{21+2*i}, v7, v{40+w}")
k(f"v_mul_u32_u24 v4, 1280, v2\nv_add_u32 v4, v4, v3\ns_mov_b32 s8, {O}")
for i in range(10): k(f"v_cvt_pk_bf16_f32 v{10+i}, v{20+2*i}, v{21+2*i}")
for i in range(5): k(f"buffer_store_dwordx2 v[{10+2*i}:{11+2*i}], v4, s[4:7], s8 offen offset:{8*i}")

gemm("wo_kernel", O, WOT, AT, 640, True)

k = K("ln2_kernel", 512)
k.srds(x=4, ws=8, wr=12, out=16)
rowsetup(k); ldbf(k, 4, 0, 3, 20, 10)
k(f"s_mov_b32 s3, {AT}")
for j in range(5): k(f"buffer_load_dwordx2 v[{50+2*j}:{51+2*j}], v5, s[8:11], s3 offen offset:{512*j}")
ldmod(k, 8, 2, 30)
for j in range(10): k(f"v_fma_f32 v{50+j}, v{50+j}, v{30+j}, v{20+j}\nv_mov_b32 v{20+j}, v{50+j}")
k(f"s_mov_b32 s3, {X1}")
for j in range(5): k(f"buffer_store_dwordx2 v[{50+2*j}:{51+2*j}], v5, s[8:11], s3 offen offset:{512*j}")
ln(k, 20); ldmod(k, 8, 3, 30); ldmod(k, 8, 4, 40)
for j in range(10): k(f"v_fma_f32 v{20+j}, v{20+j}, v{40+j}, v{30+j}")
k(f"s_mov_b32 s3, {H2}"); stbf(k, 8, "s3", 3, 20, 10)
k("v_lshlrev_b32 v9, 2, v2"); ldbf(k, 12, 0, 9, 30, 60)
k("v_mov_b32 v6, 0")
for j in range(10): k(f"v_fmac_f32 v6, v{20+j}, v{30+j}")
k.wave_sum(6, 7)
k(f"v_lshlrev_b32 v7, 2, v1\ns_mov_b32 s3, {R}\nbuffer_store_dword v6, v7, s[8:11], s3 offen")
ldmod(k, 8, 5, 30)
for j in range(10): k(f"v_fma_f32 v{20+j}, v{20+j}, v{30+j}, v{50+j}")
stbf(k, 16, 0, 3, 20, 10)

def argmax(k, srd):
    k(f"v_and_b32 v1, 63, v0\nv_lshlrev_b32 v2, 2, v1\ns_mov_b32 s3, {R}\nv_mov_b32 v9, 0xff800000\nv_mov_b32 v8, 0")
    for j in range(32):
        if j % 16 == 0 and j: k("s_add_u32 s3, s3, 4096")
        k(f"buffer_load_dword v{20+j}, v2, s[{srd}:{srd+3}], s3 offen offset:{256*(j%16)}")
    k("s_waitcnt vmcnt(0)")
    for j in range(32):
        k(f"v_add_u32 v3, {64*j}, v1\nv_cmp_gt_f32 vcc, v{20+j}, v9\ns_nop 1\nv_cndmask_b32 v9, v9, v{20+j}, vcc\nv_cndmask_b32 v8, v8, v3, vcc")
    k("v_mov_b32 v6, v9")
    for m in (0x041F, 0x081F, 0x101F, 0x201F, 0x401F):
        k(f"ds_swizzle_b32 v7, v6 offset:{m}\ns_waitcnt lgkmcnt(0)\nv_max_f32 v6, v6, v7")
    k("v_mov_b32 v7, v6\ns_nop 1\nv_permlane32_swap_b32 v6, v7\ns_nop 1\nv_max_f32 v6, v6, v7")
    k("v_cmp_eq_f32 vcc, v6, v9\ns_nop 4\ns_ff1_i32_b64 s43, vcc\ns_nop 4\nv_readlane_b32 s42, v8, s43\nv_mov_b32 v9, v6\ns_nop 4")

k = K("gu_kernel", 27, lds=16384)
k.srds(ws=4, wg=8, wu=12)
argmax(k, 4)
k(f"s_mul_i32 s3, s42, 1280\ns_add_u32 s3, s3, {H2}")
for j in range(3):
    k(f"v_add_u32 v1, {256*j}, v0\nv_lshlrev_b32 v2, 1, v1\nbuffer_load_ushort v3, v2, s[4:7], s3 offen\ns_waitcnt vmcnt(0)\nv_lshlrev_b32 v3, 16, v3\nv_lshlrev_b32 v2, 2, v1\nds_write_b32 v2, v3")
k("s_waitcnt lgkmcnt(0)\ns_barrier")
gemv(k, 8, 3456, 640, 10); gemv(k, 12, 3456, 640, 12)
k.rbf(10); silu(k, 10, 6); k.rbf(10); k.rbf(12); k("v_mul_f32 v10, v10, v12"); k.rbf(10)
k(f"s_lshl_b32 s3, s2, 8\ns_add_u32 s3, s3, {ACT}\nbuffer_store_dword v10, v5, s[4:7], s3 offen")

k = K("down_kernel", 10, lds=16384)
k.srds(ws=4, wd=8, out=12)
argmax(k, 4)
k(f"s_mov_b32 s3, {ACT}")
for j in range(7):
    k(f"v_add_u32 v1, {256*j}, v0\nv_lshlrev_b32 v2, 2, v1\nbuffer_load_dword v3, v2, s[4:7], s3 offen\ns_waitcnt vmcnt(0)\nds_write_b32 v2, v3")
k("s_waitcnt lgkmcnt(0)\ns_barrier")
gemv(k, 8, 1280, 1728, 10)
k("v_mul_f32 v9, 0xbfb8aa3b, v9\nv_exp_f32 v9, v9\ns_nop 0\nv_add_f32 v9, 1.0, v9\nv_rcp_f32 v9, v9\ns_nop 0\nv_mul_f32 v10, v10, v9")
k(f"s_lshl_b32 s20, s2, 8\ns_mul_i32 s21, s42, 2560\ns_add_u32 s21, s21, s20\ns_add_u32 s22, s21, {X1}\ns_lshr_b32 s21, s21, 1\ns_add_u32 s23, s21, {H2}\ns_add_u32 s20, s20, {MOD+5*2560}")
k("v_lshrrev_b32 v6, 1, v5\nbuffer_load_dword v11, v5, s[4:7], s22 offen\nbuffer_load_ushort v12, v6, s[4:7], s23 offen\nbuffer_load_dword v13, v5, s[4:7], s20 offen\ns_waitcnt vmcnt(0)")
k("v_lshlrev_b32 v12, 16, v12\nv_add_f32 v12, v12, v10\nv_fma_f32 v11, v12, v13, v11\nv_cvt_pk_bf16_f32 v11, v11, v11\nbuffer_store_short v11, v6, s[12:15], s21 offen")

def emit(ks, order):
    t = HDR
    for k in order: t += f"; @launch kernel={k.label} grid=({k.grid},1,1) block=({k.block},1,1) lds={k.lds}\n"
    t += '.amdgcn_target "amdgcn-amd-amdhsa--gfx950"\n.text\n'
    for k in ks:
        t += f".globl {k.label}\n.p2align 8\n.type {k.label},@function\n{k.label}:\n" + "\n".join(k.l) + f"\ns_waitcnt vmcnt(0)\n{k.label}_end:\ns_endpgm\n"
    t += '.section .rodata,"a"\n'
    for k in ks:
        t += f""".p2align 6
.amdhsa_kernel {k.label}
  .amdhsa_next_free_vgpr {k.vgpr}
  .amdhsa_next_free_sgpr 96
  .amdhsa_accum_offset {min(k.vgpr,256)}
  .amdhsa_group_segment_fixed_size 0
  .amdhsa_kernarg_size 104
  .amdhsa_user_sgpr_count 2
  .amdhsa_user_sgpr_kernarg_segment_ptr 1
  .amdhsa_system_sgpr_workgroup_id_x 1
  .amdhsa_float_denorm_mode_32 3
  .amdhsa_float_denorm_mode_16_64 3
.end_amdhsa_kernel
"""
    return t

if __name__ == "__main__":
    open(sys.argv[1], "w").write(emit(kernels, kernels))
```

```python
import sys
import gen_base as g
from gen_base import K, kernels, emit, KOFF, SZ
KOFF['bx'] = 24; SZ['bx'] = 2621440; SZ['ws'] = 0x10000000
base = list(kernels)
def chain(label, buf, n, start, stride, flags=""):
    k = K(label, 1, block=64)
    k.srds(**{buf: 4})
    k(f"v_mov_b32 v1, {start}\ns_mov_b64 exec, 1\ns_mov_b32 s8, 0\n@l:")
    k(f"buffer_load_dword v2, v1, s[4:7], 0 offen {flags}\ns_waitcnt vmcnt(0)\nv_and_b32 v2, 0, v2\nv_add_u32 v1, {stride}, v1\nv_add_u32 v1, v1, v2")
    k(f"s_add_u32 s8, s8, 1\ns_cmp_lt_u32 s8, {n}\ns_cbranch_scc1 @l")
    return k
def empty(label):
    return K(label, 256)
def stream(label, buf, start, nld, flags):
    k = K(label, 256, vgpr=256)
    k.srds(**{buf: 4})
    k(f"s_mul_i32 s8, s2, {nld*4096}\ns_add_u32 s8, s8, {start}\nv_lshlrev_b32 v1, 4, v0")
    for i in range(nld):
        k(f"buffer_load_dwordx4 v[{4+4*(i%60)}:{7+4*(i%60)}], v1, s[4:7], s8 offen {flags}\ns_add_u32 s8, s8, 4096")
    return k
V = {
 "e1": lambda: [empty("e1_kernel")],
 "e8": lambda: [empty("e1_kernel")]*8,
 "bx128": lambda: [chain("p_kernel", "bx", 128, 0, 20480+128)],
 "ws0": lambda: [chain("p_kernel", "ws", 128, 0x4000000, 20480+128)],
 "wsend": lambda: [chain("p_kernel", "ws", 128, 0xF800000, 20480+128)],
 "out": lambda: [chain("p_kernel", "out", 128, 0, 20480+128)],
 "st_plain": lambda: [stream("p_kernel", "ws", 0x4000000, 60, "")],
 "st_nt": lambda: [stream("p_kernel", "ws", 0x4000000, 60, "nt")],
 "st_plain_end": lambda: [stream("p_kernel", "ws", 0xC000000, 60, "")],
 "st_nt_end": lambda: [stream("p_kernel", "ws", 0xC000000, 60, "nt")],
 "wmod": lambda: [chain("p_kernel", "wmod", 128, 0, 20480+128)],
 "x": lambda: [chain("p_kernel", "x", 128, 0, 20480+128)],
}
for name in sys.argv[1:]:
    pre = V[name]()
    uniq = []
    for k in pre + base:
        if k not in uniq: uniq.append(k)
    open(f"probe_{name}.s", "w").write(emit(uniq, pre + base))
```

```python
import re

class G:
    def __init__(self):
        self.l = []; self.vmq = []; self.lgq = []
    def __call__(self, s):
        for x in s.split("\n"):
            x = x.strip()
            if x: self.l.append(x)
        return self
    def vm(self, s, tag):
        self(s); self.vmq.append(tag)
    def lg(self, s, tag):
        self(s); self.lgq.append(tag)
    def _cnt(self, q, tags, mx):
        if tags is None: return None
        if tags == "*":
            if not q: return None
            del q[:]; return 0
        if isinstance(tags, str): tags = [tags]
        idx = [i for i, t in enumerate(q) if t in tags]
        if not idx: return None
        n = len(q) - 1 - idx[-1]
        if n > mx:
            n = mx
        del q[:len(q) - n]
        return n
    def waitstr(self, vm=None, lg=None):
        a = self._cnt(self.vmq, vm, 63); b = self._cnt(self.lgq, lg, 15)
        p = []
        if a is not None: p.append(f"vmcnt({a})")
        if b is not None: p.append(f"lgkmcnt({b})")
        return "s_waitcnt " + " ".join(p) if p else None
    def wait(self, vm=None, lg=None):
        s = self.waitstr(vm, lg)
        if s: self(s)
    def item(self, it):
        if isinstance(it, str): self(it)
        elif it[0] == 'vm': self.vm(it[1], it[2])
        elif it[0] == 'lg': self.lg(it[1], it[2])
        elif it[0] == 'wait': self.wait(it[1], it[2])
        elif it[0] == 's': self(it[1])
        else: raise ValueError(it)

def regs(op):
    op = op.strip()
    neg = op.lstrip("-")
    if neg.startswith("abs(") or neg.startswith("|"): neg = neg.strip("|").replace("abs(", "").rstrip(")")
    m = re.fullmatch(r"([vas])(\d+)", neg)
    if m: return {(m.group(1), int(m.group(2)))}
    m = re.fullmatch(r"([vas])\[(\d+):(\d+)\]", neg)
    if m: return {(m.group(1), i) for i in range(int(m.group(2)), int(m.group(3)) + 1)}
    if neg in ("vcc", "vcc_lo", "vcc_hi"): return {("s", "vcc")}
    if neg in ("exec", "exec_lo", "exec_hi"): return {("s", "exec")}
    if neg == "m0": return {("s", "m0")}
    return set()

TRANS = ("v_exp_f32", "v_log_f32", "v_rcp_f32", "v_rsq_f32", "v_sqrt_f32")
class I:
    def __init__(self, t):
        self.t = t
        p = t.split(None, 1); self.mn = mn = p[0]
        ops = [o.strip() for o in p[1].split(",")] if len(p) > 1 else []
        clean = []
        for o in ops:
            clean.append(o.split()[0] if o else o)
        self.lds = " lds" in t
        R = [regs(o) for o in clean]
        U = lambda xs: set().union(*xs) if xs else set()
        self.cls = "other"; self.d = set(); self.s = set(); self.ab = set(); self.c = set(); self.lanesel = set(); self.data = set()
        if mn.startswith("v_mfma"):
            self.cls = "mfma"; self.d = R[0]; self.ab = R[1] | R[2]; self.c = R[3]; self.s = self.ab | self.c
        elif mn.startswith("v_"):
            self.cls = "valu"
            if "swap" in mn: self.d = R[0] | R[1]; self.s = set(self.d)
            else:
                self.d = R[0]; self.s = U(R[1:])
                if mn.startswith(("v_fmac", "v_dot2c", "v_writelane")) or "_dpp" in mn: self.s |= R[0]
                if mn.startswith(("v_readlane", "v_writelane")): self.lanesel = R[2]
        elif mn.startswith(("buffer_", "global_")):
            self.cls = "vmem"
            if "load" in mn and not self.lds: self.d = R[0]; self.s = U(R[1:])
            else: self.s = U(R)
            if mn.startswith("buffer_store") and mn.endswith(("x3", "x4")): self.data = R[0]
        elif mn.startswith("ds_"):
            self.cls = "ds"
            if "read" in mn or "swizzle" in mn or "permute" in mn: self.d = R[0]; self.s = U(R[1:])
            else: self.s = U(R)
        elif mn.startswith("s_"):
            self.cls = "salu"
            if R and not mn.startswith(("s_cmp", "s_waitcnt", "s_cbranch", "s_branch", "s_nop", "s_sleep", "s_bitcmp")): self.d = R[0]; self.s = U(R[1:])
        self.states = 1
        if mn == "s_nop": self.states = int(ops[0]) + 1
        self.trans = mn.startswith(TRANS); self.dot = mn.startswith("v_dot"); self.dpp = "_dpp" in mn
        self.perm = mn.startswith("v_permlane"); self.rdl = mn.startswith(("v_readlane", "v_readfirstlane"))

def need(p, c):
    n = 0
    V = lambda S: {r for r in S if r[0] in "va"}
    S_ = lambda S: {r for r in S if r[0] == "s"}
    if p.cls == "valu":
        if V(p.d) & V(c.s):
            if c.perm or c.dpp or c.cls == "mfma": n = max(n, 2)
            if c.rdl: n = max(n, 1)
            if p.trans and c.cls == "valu" and not c.trans: n = max(n, 1)
        if p.dot and (V(p.d) & (V(c.s) | V(c.d))) and c.cls in ("valu", "mfma", "vmem", "ds"):
            if c.mn != p.mn: n = max(n, 3)
        if S_(p.d) & S_(c.s):
            if c.cls == "valu": n = max(n, 4 if (S_(p.d) & c.lanesel) else 2)
            if c.cls == "vmem": n = max(n, 5)
    if p.cls == "mfma":
        if c.cls == "mfma":
            if p.d & c.ab: n = max(n, 8)
            if p.d & c.c and p.d != c.c: n = max(n, 6)
            if p.d & c.c and p.d == c.c and p.mn != c.mn: n = max(n, 6)
        elif c.cls in ("valu", "vmem", "ds"):
            if p.d & (c.s | c.d): n = max(n, 8)
            if c.cls == "valu" and p.c & c.d: n = max(n, 3)
    if p.data and (p.data & c.d): n = max(n, 2 if c.cls == "valu" else 1)
    if p.cls == "salu" and ("s", "m0") in p.d and c.cls == "vmem" and c.lds: n = max(n, 1)
    return n

def pad_hazards(lines, verbose=False):
    out = []; hist = []; added = 0
    for t in lines:
        if t.endswith(":") or t.startswith((".", ";")):
            out.append(t); continue
        c = I(t)
        dist = 0; req = 0
        for p in reversed(hist):
            k = need(p, c) - dist
            if k > req: req = k
            dist += p.states
            if dist >= 8: break
        if req > 0:
            nop = I(f"s_nop {req-1}"); out.append(nop.t); hist.append(nop); added += req
            if verbose: print("pad", req, "before", t)
        out.append(t); hist.append(c)
        if len(hist) > 12: hist = hist[-12:]
    return out, added

def gaps(g, mfmas, mem, valu, pre=None, solo=("ds_write_b128",)):
    pre = pre or {}
    vq = list(valu)
    for i, m in enumerate(mfmas):
        for it in pre.get(i, []): g.item(it)
        g(m)
        room = 2
        for it in mem.get(i, []):
            g.item(it)
            if not isinstance(it, str) and it[0] in ("vm", "lg"):
                room -= 2 if it[1].startswith(solo) else 1
        while room > 0 and vq and vq[0][0] <= i:
            it = vq[0][1]
            if not isinstance(it, str) and it[0] in ("vm", "lg"):
                if room < 2: break
                room -= 2 if it[1].startswith(solo) else 1
            elif isinstance(it, str): room -= 1
            g.item(it); vq.pop(0)
    return vq
```

```python
import sys, struct, math
from gl import *
NAME = "adaLN_cond__sliding_local_dilated__moe_arch_mod__prompt"
P = dict(dev=0, lead=3, lpk=4, odelay=40, wopull=1, spin=1 << 16, adelay=0, wsc1=1)
for a in sys.argv[2:]:
    k, v = a.split("="); P[k] = int(v)
DEV = P["dev"]
f2u = lambda f: struct.unpack("<I", struct.pack("<f", f))[0]

PUB1, MOD2, STATS, CAND, CROW, CBASE, OUTD, YP, WPP, OPP, TSB = 0x1000, 0x10000, 0x20000, 0x60000, 0x70000, 0x80000, 0xA0000, 0xB0000, 0x100000, 0x400000, 0x700000
WSZ = 0x800000
OOB = 0x40000000
GS, OST, XR, MV, AM = 122880, 128000, 142080, 155392, 158464
WST, MST, CST = 61440, 61440 + 12288, 61440 + 12288 + 7168
sWS, sX, sWQ, sWM, sC, sWO, sWR, sOUT, sPZ = 4, 8, 12, 16, 20, 24, 28, 32, 36
sTAG, sE, sXC, sI, sHG, sXB, sOB, sRB3, sCG = 40, 41, 42, 43, 44, 45, 46, 47, 96
sSPIN, sPA, sPB = 97, 98, 99
srd = lambda s: f"s[{s}:{s+3}]"
g = G()
nts = [0]
def TS(n):
    if DEV: g(f"s_memrealtime s[{64+2*n}:{65+2*n}]")
def vr(b, n): return f"v[{b}:{b+n-1}]" if n > 1 else f"v{b}"
def ar(b, n): return f"a[{b}:{b+n-1}]"
def spin(lab_back, lab_out):
    g(f"s_add_u32 s{sSPIN}, s{sSPIN}, 1\ns_cmp_gt_u32 s{sSPIN}, {P['spin']}\ns_cbranch_scc1 {lab_out}\ns_cbranch_vccnz {lab_back}")
def silu(v, t):
    g(f"v_mul_f32 v{t}, 0xbfb8aa3b, v{v}\nv_exp_f32 v{t}, v{t}\nv_add_f32 v{t}, 1.0, v{t}\nv_rcp_f32 v{t}, v{t}\nv_mul_f32 v{v}, v{v}, v{t}")
DPP = "row_mask:0xf bank_mask:0xf"
ool = []

g("s_cmp_ge_u32 s2, 256\ns_cbranch_scc1 L_end")
TS(0)
for s, off in ((sWS, 96), (sWQ, 8), (sWM, 72), (sC, 64), (sX, 0), (sWO, 16), (sWR, 32), (sOUT, 80)):
    g(f"s_load_dwordx2 s[{s}:{s+1}], s[0:1], {off}")
g(f"""s_getpc_b64 s[48:49]
v_lshrrev_b32 v4, 6, v0
v_and_b32 v1, 63, v0
v_readfirstlane_b32 s3, v4
s_and_b32 s{sXC}, s2, 7
s_lshr_b32 s{sI}, s2, 3
s_lshl_b32 s50, s{sI}, 2
s_add_u32 s50, s50, s3
s_mul_i32 s50, s50, 384
v_lshlrev_b32 v5, 7, v1
v_add_u32 v5, s50, v5
s_mov_b64 exec, 7""")
g.vm("global_load_dword v19, v5, s[48:49]", "pf")
g("s_mov_b64 exec, -1")
for s, sz in ((sWS, WSZ), (sWQ, 2457600), (sWM, 4915200), (sC, 1280), (sX, 2621440), (sWO, 819200), (sWR, 1280), (sOUT, 2621440), (sPZ, WSZ)):
    g(f"s_mov_b32 s{s+2}, {sz}\ns_mov_b32 s{s+3}, 0x20000")
g(f"""s_mov_b32 s{sSPIN}, 0
s_mov_b32 s{sPA}, 0x0c0c0400
s_mov_b32 s{sPB}, 0x04000c0c
v_and_b32 v2, 15, v1
v_lshrrev_b32 v3, 4, v1
s_cmp_lt_u32 s2, 224
s_cselect_b32 s{sX+2}, s{sX+2}, 0
s_cselect_b32 s{sPZ+2}, s{sPZ+2}, 0""")
g(f"""s_mul_i32 s55, s2, 10923
s_lshr_b32 s55, s55, 16
s_mul_i32 s56, s55, 6
s_sub_u32 s56, s2, s56
s_mul_i32 s50, s55, 61440
s_mul_i32 s57, s56, 640
s_add_u32 s50, s50, s57
s_lshr_b32 s57, s56, 1
s_and_b32 s56, s56, 1
s_lshl_b32 s56, s56, 2
s_add_u32 s56, s56, s3
s_mul_i32 s51, s56, 307200
s_mul_i32 s55, s55, 7680
s_mul_i32 s57, s57, 2560
s_add_u32 s51, s51, s55
s_add_u32 s51, s51, s57
s_add_u32 s51, s51, {WPP}
s_mul_i32 s55, s{sXC}, 30
s_add_u32 s55, s55, s{sI}
s_mul_i32 s56, s55, 820
s_lshr_b32 s56, s56, 16
s_mul_i32 s57, s56, 80
s_sub_u32 s57, s55, s57
s_mul_i32 s52, s56, {224*7680}
s_lshl_b32 s58, s57, 5
s_add_u32 s52, s52, s58
s_lshl_b32 s53, s55, 7
s_add_u32 s53, s53, {PUB1}
s_mul_i32 s54, s56, 448""")
assert all((i*820 >> 16) == i//80 for i in range(256)) and all((i*10923 >> 16) == i//6 for i in range(256))
assert all((u*1639 >> 16) == u//40 for u in range(768))
g(f"v_mov_b32 v26, {OOB}")
for n in range(3):
    g(f"""v_add_u32 v23, {256*n}, v0
v_mul_u32_u24 v24, 1639, v23
v_lshrrev_b32 v24, 16, v24
v_mul_u32_u24 v25, 3200, v24
v_lshl_add_u32 v{20+n}, v23, 4, v25""")
g("v_cmp_gt_u32 vcc, 128, v0\nv_cndmask_b32 v22, v26, v22, vcc")
g("v_lshrrev_b32 v27, 1, v1\nv_mul_u32_u24 v27, 7680, v27\nv_and_b32 v28, 1, v1\nv_lshl_add_u32 v27, v28, 4, v27\nv_lshlrev_b32 v28, 3, v1\nv_mov_b32 v29, 0")
g(f"s_lshl_b32 s59, s3, 10\ns_add_u32 s59, s59, {WST}")
g("s_waitcnt lgkmcnt(0)")
g(f"s_mov_b32 s{sPZ}, s{sWS}\ns_mov_b32 s{sPZ+1}, s{sWS+1}")
g("s_cmp_ge_u32 s2, 240\ns_cbranch_scc1 L_svc0")
g("s_cmp_eq_u32 s3, 3\ns_cbranch_scc1 L_p1b")

def xload(i):
    for c in range(5):
        g.vm(f"buffer_load_dwordx4 {vr(100+(i*5+c)*4,4)}, v4, {srd(sX)}, s{sXB} offen offset:{256*c}", f"x{i}")
    g(f"s_add_u32 s{sXB}, s{sXB}, 40960")

def main_addr():
    g(f"""s_lshr_b32 s55, s{sXC}, 2
s_bfe_u32 s56, s{sXC}, 0x10001
s_mul_i32 s56, s56, 7
s_lshr_b32 s57, s{sI}, 2
s_add_u32 s56, s56, s57
s_and_b32 s{sHG}, s{sXC}, 1
s_lshl_b32 s{sHG}, s{sHG}, 2
s_and_b32 s57, s{sI}, 3
s_add_u32 s{sHG}, s{sHG}, s57
s_mul_i32 s57, s56, 73
s_lshl_b32 s{sXB}, s57, 1
s_add_u32 s{sXB}, s{sXB}, s55
s_mul_i32 s{sXB}, s{sXB}, 1280
s_mul_i32 s58, s{sI}, 37
s_lshr_b32 s58, s58, 8
s_mul_i32 s60, s58, 7
s_sub_u32 s{sCG}, s{sI}, s60
s_lshl_b32 s{sRB3}, s{sXC}, 2
s_add_u32 s{sRB3}, s{sRB3}, s58
v_lshrrev_b32 v5, 4, v0
v_mul_u32_u24 v4, 2560, v5
v_lshl_add_u32 v4, v2, 4, v4""")
    assert all((i*37 >> 8) == i//7 for i in range(32))
    g(f"""s_cmp_eq_u32 s56, 0
s_cselect_b32 s58, 0, 7
s_add_u32 s58, s58, s57
s_add_u32 s60, s57, 80
s_min_u32 s60, s60, 1024
s_sub_u32 s60, s60, s58
s_andn2_b32 s61, s58, 15
s_lshl_b32 s62, s55, 10
s_add_u32 s62, s62, s61
s_mul_i32 s{sOB}, s62, 1280
s_mul_i32 s62, s{sHG}, 2560
s_add_u32 s{sOB}, s{sOB}, s62
s_add_u32 s{sOB}, s{sOB}, {OPP}
s_sub_u32 s62, s61, s58
s_sub_u32 s63, s58, s57""")
    assert all((v*410 >> 16) == v//160 for v in range(1024))
    for n in range(4):
        g(f"""v_add_u32 v30, {256*n}, v0
v_mul_u32_u24 v31, 410, v30
v_lshrrev_b32 v31, 16, v31
v_mul_u32_u24 v32, 17920, v31
v_lshl_add_u32 v32, v30, 4, v32
v_lshl_add_u32 v33, v31, 4, v2
v_add_u32 v33, s62, v33
v_cmp_gt_u32 vcc, s60, v33
v_add_u32 v33, s63, v33
v_mul_u32_u24 v34, 160, v31
v_cndmask_b32 v{11+n}, v26, v32, vcc
v_cndmask_b32 v33, 0, v33, vcc
v_sub_u32 v34, v30, v34
v_and_b32 v34, 0xf0, v34
v_mul_u32_u24 v33, 176, v33
v_add_u32 v{15+n}, v33, v34""")
    g(f"""s_lshl_b32 s62, s{sRB3}, 11
s_lshl_b32 s63, s{sCG}, 8
s_add_u32 s62, s62, s63
s_lshl_b32 s63, s3, 6
s_add_u32 s62, s62, s63
s_add_u32 s62, s62, {CROW}
v_lshlrev_b32 v35, 4, v1
v_cmp_gt_u32 vcc, 4, v1
v_mov_b32 v36, -1
v_mov_b32 v37, -1
v_cndmask_b32 v35, v26, v35, vcc
v_mov_b32 v38, -1
v_mov_b32 v39, -1""")

def phase1(B):
    g.vmq[:] = ["pf"]; g.lgq[:] = []
    if B: g.vm(f"buffer_load_dwordx2 v[40:41], v28, {srd(sC)}, s54 offen", "c")
    g.vm(f"buffer_load_dword v42, v29, {srd(sWS)}, 0 offen sc1", "E")
    for n in range(3):
        g(f"s_add_u32 m0, s59, {4096*n}")
        g.vm(f"buffer_load_dwordx4 v{20+n}, {srd(sWQ)}, s50 offen nt lds", "W")
    if B:
        for n in range(7):
            g(f"s_mov_b32 m0, {MST+1024*n}")
            g.vm(f"buffer_load_dwordx4 v27, {srd(sWM)}, s52 offen lds", "M")
            g(f"s_add_u32 s52, s52, {32*7680}")
    main_addr()
    for n in range(4):
        g.vm(f"buffer_store_dwordx4 v[36:39], v{11+n}, {srd(sPZ)}, s{sOB} offen sc1", "pz")
    g.vm(f"buffer_store_dwordx4 v[36:39], v35, {srd(sPZ)}, s62 offen sc1", "pz")
    xload(0)
    g(f"""v_bfe_u32 v30, v1, 2, 2
v_and_b32 v31, 3, v1
v_and_b32 v32, 1, v3
v_lshrrev_b32 v33, 1, v3
s_mul_i32 s55, s3, 160
s_add_u32 s55, s55, {WST}
v_lshl_add_u32 v34, v32, 3, v30
v_mul_u32_u24 v34, 640, v34
v_mul_u32_u24 v33, 40, v33
v_lshl_add_u32 v33, v31, 3, v33
v_add3_u32 v20, v34, v33, s55
v_and_b32 v33, 1, v31
v_lshl_add_u32 v34, v33, 3, v30
v_mul_u32_u24 v34, 640, v34
v_lshrrev_b32 v33, 1, v31
v_lshl_add_u32 v33, v32, 1, v33
v_mul_u32_u24 v33, 40, v33
v_add3_u32 v21, v34, v33, s55
v_lshlrev_b32 v22, 4, v1
v_cmp_gt_u32 vcc, 32, v1
v_lshlrev_b32 v24, 2, v1
v_lshl_add_u32 v25, v3, 3, v30
v_cndmask_b32 v23, v26, v22, vcc
v_cndmask_b32 v24, v26, v24, vcc
v_lshlrev_b32 v25, 5, v25
v_lshl_add_u32 v25, v31, 3, v25
v_add_u32 v25, {MST}, v25""")
    if not B: g("v_mov_b32 v24, v26")
    if B:
        g.wait(vm="c")
        g("v_lshlrev_b32 v44, 16, v40\nv_and_b32 v45, 0xffff0000, v40\nv_lshlrev_b32 v46, 16, v41\nv_and_b32 v47, 0xffff0000, v41")
        for k in range(4): g(f"v_mul_f32 v{48+k}, 0xbfb8aa3b, v{44+k}")
        for k in range(4): g(f"v_exp_f32 v{48+k}, v{48+k}")
        for k in range(4): g(f"v_add_f32 v{48+k}, 1.0, v{48+k}")
        for k in range(4): g(f"v_rcp_f32 v{48+k}, v{48+k}")
        for k in range(4): g(f"v_mul_f32 v{44+k}, v{44+k}, v{48+k}")
        g(f"v_cvt_pk_bf16_f32 v40, v44, v45\nv_cvt_pk_bf16_f32 v41, v46, v47\nv_add_u32 v28, {CST}, v28")
        g.lg("ds_write_b64 v28, v[40:41]", "cw")
        g(f"v_lshlrev_b32 v28, 4, v3\nv_add_u32 v28, {CST}, v28")
        g.wait(lg="cw")
        for ks in range(7): g.lg(f"ds_read_b128 {vr(200+4*ks,4)}, v28 offset:{64*ks}", "cf")
    g.wait(vm="W")
    g(f"v_readfirstlane_b32 s{sE}, v42")
    TS(1)
    g("s_barrier")
    for e, (a, off) in enumerate(((20, 0), (20, 80), (21, 32))):
        for hh in range(2):
            g.lg(f"ds_read_b64_tr_b16 {vr(44+4*e+2*hh,2)}, v{a} offset:{off+2560*hh}", f"t{e}")
    g(f"s_mul_i32 s{sTAG}, s{sE}, 0x9E3779B1\ns_add_u32 s{sTAG}, s{sTAG}, 0x85EBCA6B")
    for e in range(3):
        g.wait(lg=f"t{e}")
        g.vm(f"buffer_store_dwordx4 {vr(44+4*e,4)}, v{23 if e==2 else 22}, {srd(sWS)}, s51 offen offset:{1024*e} sc1", "ws")
    xload(1)
    g(f"v_lshlrev_b32 v30, 3, v31\nv_lshrrev_b32 v19, v30, s{sTAG}\nv_and_b32 v19, 0xff, v19")
    if B:
        g.wait(vm="M")
        for ks in range(7):
            for hh in range(2):
                g.lg(f"ds_read_b64_tr_b16 {vr(60+4*ks+2*hh,2)}, v25 offset:{1024*ks+128*hh}", f"m{ks}")
        for ks in range(7):
            g.wait(lg=f"m{ks}")
            g(f"v_mfma_f32_16x16x32_bf16 v[56:59], {vr(200+4*ks,4)}, {vr(60+4*ks,4)}, {'v[56:59]' if ks else 0}")
        g("s_mov_b32 s55, 0xffffff00\nv_and_or_b32 v56, v56, s55, v19")
    g.wait(vm="ws", lg="*")
    TS(2)

phase1(False)
g("s_branch L_p1j\nL_p1b:")
phase1(True)
g("L_p1j:\ns_barrier")
g.vm(f"buffer_store_dword v56, v24, {srd(sWS)}, s53 offen sc1", "pub")
g("s_cmp_ge_u32 s2, 224\ns_cbranch_scc1 L_svc1")

def ln(i):
    g.wait(vm=f"x{i}")
    T = 100 + i*20
    g("s_mov_b32 s55, 0x3f803f80\nv_mov_b32 v20, 0\nv_mov_b32 v21, 0")
    for d in range(20): g(f"v_dot2c_f32_bf16 v20, s55, v{T+d}\nv_dot2c_f32_bf16 v21, v{T+d}, v{T+d}")
    for r in (8, 4, 2, 1):
        g(f"v_add_f32_dpp v20, v20, v20 row_ror:{r} {DPP}\nv_add_f32_dpp v21, v21, v21 row_ror:{r} {DPP}")
        if r > 1: g(f"v_lshlrev_b32 v{24+ (8,4,2).index(r)*2}, 16, v{T+(8,4,2).index(r)}")
    g(f"""v_mul_f32 v20, 0x3acccccd, v20
v_mul_f32 v21, 0x3acccccd, v21
v_fma_f32 v21, -v20, v20, v21
v_max_f32 v21, 0, v21
v_add_f32 v21, 0x3727c5ac, v21
v_rsq_f32 v22, v21
v_and_b32 v25, 0xffff0000, v{T}
v_mul_f32 v23, -v20, v22""")
    for d in range(20):
        t = 24 + 2*(d % 4)
        if d >= 3: g(f"v_lshlrev_b32 v{t}, 16, v{T+d}")
        if d >= 1: g(f"v_and_b32 v{t+1}, 0xffff0000, v{T+d}")
        g(f"v_pk_fma_f32 v[{t}:{t+1}], v[{t}:{t+1}], v[22:23], v[22:23] op_sel:[0,0,1] op_sel_hi:[1,0,1]")
        if d >= 1: g(f"v_cvt_pk_f16_f32 v{T+d-1}, v{24+2*((d-1)%4)}, v{25+2*((d-1)%4)}")
    g(f"v_cvt_pk_f16_f32 v{T+19}, v30, v31")

def gather_loads(q):
    for st in range(2):
        for p in range(3):
            s = f"buffer_load_dwordx4 {vr(40+12*st+4*p,4)}, v{248+st}, {srd(sWS)}, s{56+p} offen sc1"
            if q: g.vm(s, "ga")
            else: g(s)
def gather_check():
    for st in range(2):
        for p in range(3):
            b = 40 + 12*st + 4*p
            g(f"v_perm_b32 v64, v{b+1}, v{b}, s{sPA}\nv_perm_b32 v65, v{b+3}, v{b+2}, s{sPB}\nv_bitop3_b32 v{66+p}, v64, v65, s{sTAG} bitop3:0x56")
        g(f"v_or3_b32 v{69+st}, v66, v67, v68")
    g("v_and_b32 v70, v70, v250\nv_or_b32 v69, v69, v70\nv_cmp_ne_u32 vcc, 0, v69")

xload(2)
g(f"""s_mul_i32 s55, s3, 80
v_add_u32 v30, s55, v1
v_add_u32 v31, 64, v30
v_cmp_gt_u32 vcc, 16, v1
v_lshrrev_b32 v32, 2, v30
v_and_b32 v33, 3, v30
v_lshlrev_b32 v33, 4, v33
v_lshl_add_u32 v248, v32, 7, v33
v_add_u32 v249, 2048, v248
v_cndmask_b32 v249, v26, v249, vcc
v_cndmask_b32 v250, 0, -1, vcc
v_lshlrev_b32 v251, 4, v30
v_add_u32 v251, {GS}, v251
v_cmp_le_u32 vcc, 160, v30
s_mov_b32 s56, {PUB1}
s_mov_b32 s57, {PUB1+80*128}
s_mov_b32 s58, {PUB1+160*128}
v_cndmask_b32 v252, 0, 1.0, vcc
v_mov_b32 v255, v26""")
g(f"""v_lshrrev_b32 v30, 1, v3
v_and_b32 v31, 1, v3
v_mul_u32_u24 v30, 7680, v30
s_lshl_b32 s55, s3, 9
v_lshlrev_b32 v32, 8, v31
v_lshl_add_u32 v32, v2, 4, v32
v_add3_u32 v5, v30, v32, s55
v_lshrrev_b32 v32, 2, v2
v_cmp_ne_u32 vcc, 1, v32
v_max_u32 v32, 1, v32
v_add_u32 v32, -1, v32
v_mul_u32_u24 v32, 2560, v32
v_lshl_add_u32 v32, v31, 6, v32
v_and_b32 v33, 3, v2
v_lshl_add_u32 v32, v33, 4, v32
s_lshl_b32 s55, s3, 7
s_add_u32 s55, s55, 2048
v_add3_u32 v6, v30, v32, s55
v_cndmask_b32 v6, v26, v6, vcc
v_lshrrev_b32 v30, 4, v0
v_and_b32 v31, 7, v2
v_xor_b32 v30, v30, v31
v_lshlrev_b32 v30, 4, v30
v_lshl_add_u32 v30, v33, 8, v30
v_lshrrev_b32 v32, 2, v2
v_mul_u32_u24 v32, 5120, v32
v_add_u32 v7, v30, v32
v_xor_b32 v30, v2, v3
v_lshlrev_b32 v30, 4, v30
v_lshl_add_u32 v8, v3, 8, v30
v_xor_b32 v9, 64, v8
v_lshlrev_b32 v10, 5, v2
v_add_u32 v10, {GS}, v10
s_mul_i32 s59, s{sHG}, 307200
s_add_u32 s59, s59, {WPP}
s_add_u32 s60, s59, 5120""")
ln(0); xload(3); ln(1); xload(4); gather_loads(True); ln(2); ln(3)
TS(3)
g.wait(vm="ga")
gather_check()
g("s_cbranch_vccnz L_ga_retry\nL_ga_ok:")
save = g.l; g.l = []
g("L_ga_retry:"); gather_loads(False); g("s_waitcnt vmcnt(0)"); gather_check(); spin("L_ga_retry", "L_ga_ok"); g("s_branch L_ga_ok")
ool.append(g.l); g.l = save
g("s_barrier")
TS(4)
wq = []
WF = " sc1" if P["wsc1"] else ""
for ks in range(20):
    b = 40 + (ks % 12)*16
    wq += [[('vm', f"buffer_load_dwordx4 {ar(b,4)}, v5, {srd(sWS)}, s59 offen{WF}", f"w{ks}")],
           [('vm', f"buffer_load_dwordx4 {ar(b+4,4)}, v5, {srd(sWS)}, s59 offen offset:2560{WF}", f"w{ks}")],
           [('vm', f"buffer_load_dwordx4 {ar(b+8,4)}, v5, {srd(sWS)}, s60 offen{WF}", f"w{ks}"), ('s', "s_add_u32 s60, s60, 15360")],
           [('vm', f"buffer_load_dwordx4 {ar(b+12,4)}, v6, {srd(sWS)}, s59 offen{WF}", f"w{ks}"), ('s', "s_add_u32 s59, s59, 15360")]]
for _ in range(4*P["lead"]):
    for it in wq.pop(0): g.item(it)
g("s_mov_b32 s55, 0xffffff00")
for st in range(2):
    b = 40 + 12*st
    for k in range(12): g(f"v_and_b32 v{b+k}, s55, v{b+k}")
    for p in (1, 2):
        for h in (0, 2): g(f"v_pk_add_f32 v[{b+h}:{b+h+1}], v[{b+h}:{b+h+1}], v[{b+4*p+h}:{b+4*p+h+1}]")
    for rep in range(2):
        g(f"v_cvt_pk_bf16_f32 v{b+4}, v{b}, v{b+1}\nv_cvt_pk_bf16_f32 v{b+5}, v{b+2}, v{b+3}")
        g(f"v_lshlrev_b32 v{b}, 16, v{b+4}\nv_and_b32 v{b+1}, 0xffff0000, v{b+4}\nv_lshlrev_b32 v{b+2}, 16, v{b+5}\nv_and_b32 v{b+3}, 0xffff0000, v{b+5}")
        if rep == 0:
            for h in (0, 2): g(f"v_pk_add_f32 v[{b+h}:{b+h+1}], v[{b+h}:{b+h+1}], v[252:253] op_sel_hi:[1,0]")
    if st == 0: g.lg(f"ds_write_b128 v251, {vr(b,4)}", "gsw")
    else:
        g("s_mov_b64 exec, 0xffff"); g.lg(f"ds_write_b128 v251, {vr(b,4)} offset:1024", "gsw"); g("s_mov_b64 exec, -1")
ln(4)
g.wait(lg="*"); g("s_barrier")
def gs_reads(c):
    return [('lg', f"ds_read_b128 {vr(200+4*k,4)}, v10 offset:{c*512 + (2560 if k < 2 else 0) + 16*(k&1)}", "gs") for k in range(4)]
def modul(c):
    out = []
    for i in range(5):
        T = 100 + (i*5+c)*4; o = 220 + 4*(i & 1)
        for d in range(4):
            f = 216 + 2*(d & 1)
            out += [f"v_fma_mix_f32 v{f}, v{T+d}, v{200+2*d}, v{208+2*d} op_sel:[0,0,0] op_sel_hi:[1,0,0]",
                    f"v_fma_mix_f32 v{f+1}, v{T+d}, v{201+2*d}, v{209+2*d} op_sel:[1,0,0] op_sel_hi:[1,0,0]",
                    f"v_cvt_pk_bf16_f32 v{o+d}, v{f}, v{f+1}"]
        out.append(('lg', f"ds_write_b128 v7, {vr(o,4)} offset:{(c%3)*20480+i*1024}", "hw"))
    return out
def a_reads(ks):
    return [('lg', f"ds_read_b128 {ar((ks&1)*20+4*i,4)}, v{8+(ks&1)} offset:{(ks%12)*5120+i*1024}", f"a{ks}") for i in range(5)]
for it in gs_reads(0): g.item(it)
g.wait(lg="gs")
for it in modul(0): g.item(it)
for it in gs_reads(1): g.item(it)
g.wait(lg="hw"); g("s_barrier")
for it in a_reads(0): g.item(it)
TS(5)

acc = lambda t, i: 20 + (i*4+t)*4
AK, BQ, VV, VT, CC, CP, MP, SEL, ONE = 100, 120, 140, 152, 164, 168, 172, 174, 176
NEG = f2u(-1e30)
def attn_consts():
    o = [f"v_mov_b32 v180, {NEG}", "v_lshlrev_b32 v181, 2, v3", "v_sub_u32 v181, v2, v181"]
    for r in range(4):
        o += [f"v_subrev_u32 v182, {r}, v181", f"v_cmp_gt_u32 vcc, 8, v182", f"v_cmp_gt_i32 s[62:63], -8, v182", f"v_mov_b32 v{ONE+r}, 0x3f803f80",
              f"v_cndmask_b32 v{CC+r}, v180, 0, vcc", f"v_cndmask_b32 v{CP+r}, v180, 0, s[62:63]", f"v_cndmask_b32 v{184+r}, 0, -1, s[62:63]"]
    o += ["v_mov_b32 v182, 0xffff", f"v_bfi_b32 v{MP}, v182, v184, v185", f"v_bfi_b32 v{MP+1}, v182, v186, v187"]
    o += ["v_and_b32 v181, 1, v1", "v_lshlrev_b32 v181, 4, v181", "v_mov_b32 v182, 0x3f80", "v_lshlrev_b32 v182, v181, v182",
          "v_and_b32 v181, 0x32, v1", "v_cmp_eq_u32 vcc, 0x30, v181", "v_cmp_eq_u32 s[62:63], 50, v181", f"v_mov_b32 v{VV}, 0",
          f"v_cndmask_b32 v{SEL}, 0, v182, vcc", f"v_cndmask_b32 v{SEL+1}, 0, v182, s[62:63]",
          f"v_mov_b32 v{VV+1}, 0", f"v_mov_b32 v{VT}, 0", f"v_mov_b32 v{VT+1}, 0"]
    for i in range(5): o += [f"v_mov_b32 v{BQ+4*i+2}, 0", f"v_mov_b32 v{BQ+4*i+3}, 0"]
    o += ["v_mul_u32_u24 v247, 176, v2", "v_add_u32 v247, s61, v247", "v_lshl_add_u32 v246, v3, 3, v247"]
    return o
def st3_addr():
    o = []
    for n in range(3):
        o += [f"v_add_u32 v228, {64*n}, v1", "v_mul_u32_u24 v229, 5462, v228", "v_lshrrev_b32 v229, 16, v229", "v_mul_u32_u24 v230, 12, v229",
              "v_sub_u32 v228, v228, v230", "v_cmp_gt_u32 vcc, s100, v228", "v_mul_u32_u24 v230, 2560, v229", f"v_lshl_add_u32 v230, v228, 4, v230",
              f"v_cndmask_b32 v{235+n}, v255, v230, vcc", "v_lshrrev_b32 v230, 3, v229", "v_lshlrev_b32 v230, 1, v230", "v_xor_b32 v228, v228, v230",
              "v_mul_u32_u24 v230, 1280, v229", "v_lshl_add_u32 v230, v228, 4, v230", f"v_cndmask_b32 v{232+n}, v255, v230, vcc"]
    o += ["v_cmp_gt_u32 vcc, s101, v1", "v_lshlrev_b32 v228, 4, v1", "v_lshlrev_b32 v229, 3, v1", "v_cndmask_b32 v238, v255, v228, vcc", "v_cndmask_b32 v239, v255, v229, vcc", "v_cndmask_b32 v250, 0, -1, vcc"]
    return o
assert all((u*5462 >> 16) == u//12 for u in range(192))
g(f"""s_cmp_eq_u32 s{sCG}, 6
s_cselect_b32 s100, 8, 12
s_cselect_b32 s101, 16, 24
s_mul_i32 s52, s{sCG}, 192
s_mul_i32 s48, s3, 20480
s_add_u32 s48, s48, s52
s_mul_i32 s49, s3, 3072
s_lshl_b32 s53, s{sRB3}, 2
s_add_u32 s53, s53, s3
s_and_b32 s50, s53, 63
s_lshl_b32 s50, s50, 5
s_lshr_b32 s54, s53, 6
s_add_u32 s54, s50, s54
s_mul_i32 s50, s54, 1280
s_add_u32 s50, s50, s52
s_mul_i32 s51, s3, 2560
s_lshl_b32 s55, s52, 1
s_add_u32 s51, s51, s55
s_add_u32 s51, s51, {MOD2}
s_mul_i32 s61, s3, 40
s_add_u32 s61, s61, {OST}""")
def wo_dma(nlist):
    out = []
    for n in nlist:
        for k in range(3):
            out.append([('s', f"s_add_u32 m0, s49, {n*12288+k*1024}"), ('s', f"s_add_u32 s55, s48, {n*81920}"),
                        ('vm', f"buffer_load_dwordx4 v{232+k}, {srd(sWO)}, s55 offen lds", "wo")])
    return out
extra = [[('vm', f"buffer_load_dwordx4 v[240:243], v238, {srd(sWS)}, s51 offen sc1", "mv")],
         [('vm', f"buffer_load_dwordx2 v[244:245], v239, {srd(sWR)}, s52 offen", "mv")]]
for k in range(3):
    extra.append([('s', f"s_add_u32 m0, s49, {XR+k*1024}"), ('vm', f"buffer_load_dwordx4 v{235+k}, {srd(sX)}, s50 offen lds", "xr")])
dq1 = wo_dma([0, 1, 2, 3, 4, 5, 9]); dq2 = wo_dma([6, 7, 8]) + extra
carry = []
for ks in range(20):
    c = ks >> 2; ph = ks & 3
    wb = 40 + (ks % 12)*16; ab = (ks & 1)*20
    mf = []
    for i in range(5):
        for t in range(4):
            A, B = (ar(ab+4*i, 4), ar(wb+4*t, 4)) if t == 2 else (ar(wb+4*t, 4), ar(ab+4*i, 4))
            d = vr(acc(t, i), 4)
            mf.append(f"v_mfma_f32_16x16x32_bf16 {d}, {A}, {B}, {d if ks else 0}")
    pre = {0: [('wait', f"w{ks}", f"a{ks}" if ph != 3 else "*")]}
    if ph == 3: pre[0].append(('s', "s_barrier"))
    mem = {}
    if ks == 11: pre[0] += ["v_add_u32 v8, 61440, v8"]
    if ks == 12: pre[0] += ["v_add_u32 v9, 61440, v9"]
    if ks < 19:
        for j, it in enumerate(a_reads(ks+1)): mem[2*j] = [it]
    if ph == 3 and c + 2 < 5:
        for j, it in enumerate(gs_reads(c+2)): mem[10+2*j] = [it]
    slots = [1, 5, 9, 13, 17, 3, 11, 19, 7, 15]
    nl = P["lpk"]
    k = 0
    used = []
    while k < nl and wq:
        nxt = int(wq[0][0][2][1:])
        if nxt - ks >= 12: break
        used.append(wq.pop(0)); k += 1
    if not wq and ks >= 15:
        q = dq1 if dq1 else (dq2 if ks == 19 else [])
        while k < 4 and q:
            used.append(q.pop(0)); k += 1
    for j, its in zip(sorted(slots[:len(used)]), used):
        first = [x for x in its if x[0] == 's' and its.index(x) < [y[0] for y in its].index('vm')]
        rest = [x for x in its if x not in first]
        mem[j] = rest
        mem[j-1] = mem.get(j-1, []) + first
    va = list(carry)
    if ph == 0 and c < 4:
        if c == 2: va.append((0, "v_add_u32 v7, 61440, v7"))
        pre[0].insert(0, ('wait', None, "gs"))
        va += [(0, it) for it in modul(c+1)]
    if ks == 3: va += [(0, it) for it in st3_addr()[:15]]
    if ks == 7: va += [(0, it) for it in st3_addr()[15:30]]
    if ks == 11: va += [(0, it) for it in st3_addr()[30:]]
    if ks == 16: va += [(0, it) for it in attn_consts()]
    carry = gaps(g, mf, mem, va, pre)
    if ph == 2 or ph == 3: assert not carry, (ks, len(carry))
TS(6)
dq = dq1 + dq2
att = []
R5 = range(5)
cvt = lambda d, s: [f"v_cvt_pk_bf16_f32 v{d}, v{s}, v{s+1}", f"v_cvt_pk_bf16_f32 v{d+1}, v{s+2}, v{s+3}"]
for i in R5: att += cvt(AK+4*i+2, acc(3, i)) + cvt(AK+4*i, acc(1, i)) + cvt(BQ+4*i, acc(0, i))
for i in R5:
    att += [f"v_permlane32_swap_b32 v{BQ+4*i+2}, v{AK+4*i+2}", f"v_permlane32_swap_b32 v{BQ+4*i+3}, v{AK+4*i+3}"] + cvt(VV+2+2*i, acc(2, i))
for i in R5:
    att.append(f"v_mfma_f32_16x16x32_bf16 {vr(acc(1,i),4)}, {vr(AK+4*i,4)}, {vr(BQ+4*i,4)}, {vr(CC,4)}")
    if i: att.append(f"v_mfma_f32_16x16x32_bf16 {vr(acc(0,i),4)}, {vr(AK+4*i-4,4)}, {vr(BQ+4*i,4)}, {vr(CP,4)}")
for i in R5: att.append(f"v_mfma_f32_16x16x16_bf16 {vr(acc(3,i),4)}, {vr(AK+4*i+2,2)}, {vr(SEL,2)}, 0")
MX = 180
SC = f2u(20**-0.5*math.log2(math.e))
att.append(f"s_mov_b32 s62, {SC}")
for i in R5:
    s = acc(1, i)
    if i: att += [f"v_max_f32 v{s+r}, v{s+r}, v{acc(0,i)+r}" for r in range(4)]
    att += [f"v_max3_f32 v{MX+2*i}, v{s}, v{s+1}, v{s+2}", f"v_max_f32 v{MX+2*i}, v{MX+2*i}, v{s+3}", f"v_mov_b32 v{MX+2*i+1}, v{MX+2*i}"]
for i in R5: att.append(f"v_permlane32_swap_b32 v{MX+2*i}, v{MX+2*i+1}")
for i in R5: att += [f"v_max_f32 v{MX+2*i}, v{MX+2*i}, v{MX+2*i+1}", f"v_mov_b32 v{MX+2*i+1}, v{MX+2*i}"]
for i in R5: att.append(f"v_permlane16_swap_b32 v{MX+2*i}, v{MX+2*i+1}")
for i in R5: att += [f"v_max_f32 v{MX+2*i}, v{MX+2*i}, v{MX+2*i+1}", f"v_mul_f32 v{MX+2*i+1}, s62, v{MX+2*i}", f"v_mov_b32 v{MX+2*i}, s62"]
for i in R5: att += cvt(VT+2+2*i, acc(3, i))
for i in R5:
    s = acc(1, i); p = acc(2, i)
    att += [f"v_pk_fma_f32 v[{s+h}:{s+h+1}], v[{s+h}:{s+h+1}], v[{MX+2*i}:{MX+2*i+1}], v[{MX+2*i}:{MX+2*i+1}] op_sel:[0,0,1] op_sel_hi:[1,0,1] neg_lo:[0,0,1] neg_hi:[0,0,1]" for h in (0, 2)]
for i in R5:
    s = acc(1, i); p = acc(2, i)
    att += [f"v_exp_f32 v{s+r}, v{s+r}" for r in range(4)]
for i in R5:
    s = acc(1, i); p = acc(2, i)
    att += cvt(p+2, s) + [f"v_and_b32 v{p}, v{MP}, v{p+2}", f"v_and_b32 v{p+1}, v{MP+1}, v{p+3}", f"v_xor_b32 v{p+2}, v{p}, v{p+2}", f"v_xor_b32 v{p+3}, v{p+1}, v{p+3}"]
for i in R5: att.append(f"v_mfma_f32_16x16x32_bf16 {vr(acc(3,i),4)}, {vr(ONE,4)}, {vr(acc(2,i),4)}, 0")
for i in R5:
    att += [f"v_mfma_f32_16x16x32_bf16 {vr(acc(0,i),4)}, {vr(VV+2*i,4)}, {vr(acc(2,i),4)}, 0",
            f"v_mfma_f32_16x16x32_bf16 {vr(acc(1,i),4)}, {vr(VT+2*i,4)}, {vr(acc(2,i),4)}, 0", f"v_rcp_f32 v{acc(3,i)}, v{acc(3,i)}"]
for i in R5:
    for t in (0, 1):
        s = acc(t, i)
        att += [f"v_pk_mul_f32 v[{s+h}:{s+h+1}], v[{s+h}:{s+h+1}], {vr(acc(3,i),2)} op_sel_hi:[1,0]" for h in (0, 2)]
        att += cvt(s, s)
        att.append(('lg', f"ds_write_b64 v{247 if t else 246}, {vr(s,2)} offset:{i*16*176 + (32 if t else 0)}", "ow"))
step = max(1, (len(att) - 30)//(len(dq) + 1))
for n, it in enumerate(att):
    g.item(it)
    if n % step == step - 1 and dq:
        for x in dq.pop(0): g.item(x)
assert not dq
for n in range(4): g(f"v_add_u32 v{15+n}, {OST}, v{15+n}")
g.wait(lg="*"); g("s_barrier")
for n in range(4): g.lg(f"ds_read_b128 {vr(20+4*n,4)}, v{15+n}", f"or{n}")
for n in range(4):
    g.wait(lg=f"or{n}")
    g.vm(f"buffer_store_dwordx4 {vr(20+4*n,4)}, v{11+n}, {srd(sWS)}, s{sOB} offen sc1", "os")
TS(7)
def mv_check():
    g(f"v_perm_b32 v228, v241, v240, s55\nv_perm_b32 v229, v243, v242, s55\nv_xor_b32 v228, s{sTAG}, v228\nv_xor_b32 v229, s{sTAG}, v229\nv_or_b32 v228, v228, v229\nv_and_b32 v228, v228, v250\nv_cmp_ne_u32 vcc, 0, v228")
g("s_mov_b32 s55, 0x05040100")
g.wait(vm=["wo", "mv", "xr"])
mv_check()
g("s_cbranch_vccnz L_mv_retry\nL_mv_ok:")
save = g.l; g.l = []
g(f"L_mv_retry:\nbuffer_load_dwordx4 v[240:243], v238, {srd(sWS)}, s51 offen sc1\ns_waitcnt vmcnt(0)"); mv_check(); spin("L_mv_retry", "L_mv_ok"); g("s_branch L_mv_ok")
ool.append(g.l); g.l = save
for k in range(4): g(f"v_and_b32 v{240+k}, 0xffff0000, v{240+k}")
g(f"""v_lshlrev_b32 v40, 16, v244
v_and_b32 v41, 0xffff0000, v244
v_lshlrev_b32 v42, 16, v245
v_and_b32 v43, 0xffff0000, v245
s_mul_i32 s55, s3, 384
s_add_u32 s55, s55, {MV}
v_lshl_add_u32 v228, v1, 4, s55
v_pk_mul_f32 v[40:41], v[40:41], v[240:241]
v_pk_mul_f32 v[42:43], v[42:43], v[242:243]
s_mov_b64 exec, 0xffffff""")
g.lg("ds_write_b128 v228, v[240:243]", "mw"); g.lg("ds_write_b128 v228, v[40:43] offset:1536", "mw")
g(f"""s_mov_b64 exec, -1
v_bfe_u32 v228, v1, 2, 2
v_lshl_add_u32 v228, v3, 3, v228
v_mul_u32_u24 v228, 192, v228
v_and_b32 v229, 3, v1
v_lshl_add_u32 v228, v229, 3, v228
v_and_b32 v229, 1, v3
v_lshl_add_u32 v4, v229, 5, v228
v_xor_b32 v229, 1, v229
v_lshl_add_u32 v5, v229, 5, v228
v_add_u32 v6, 61440, v4
v_add_u32 v7, 61440, v5
v_lshlrev_b32 v8, 4, v1
v_lshlrev_b32 v9, 4, v3
v_add_u32 v9, {MV}, v9
v_mul_u32_u24 v10, 192, v2
v_lshl_add_u32 v10, v3, 3, v10
s_add_u32 s55, s49, {XR}
v_add_u32 v10, s55, v10
v_add_u32 v11, s55, v8
v_lshlrev_b32 v12, 2, v1
s_mul_i32 s56, s53, 20480
s_add_u32 s56, s56, {OPP}
s_add_u32 s57, s56, 4096
s_add_u32 s58, s56, 8192
s_add_u32 s59, s56, 12288
s_add_u32 s60, s56, 16384""")
g.wait(lg="*"); g("s_barrier")
TS(8)
def btr(dst, ks, j, tag):
    base = 4 + (j & 1) + (2 if ks >= 10 else 0)
    return [('lg', f"ds_read_b64_tr_b16 {dst(2*hh)}, v{base} offset:{(ks%10)*6144 + hh*768 + (j & ~1)*32}", tag) for hh in range(2)]
oload = lambda ks: f"buffer_load_dwordx4 {vr(100+4*ks,4)}, v8, {srd(sWS)}, s{56+ks//4} offen offset:{(ks%4)*1024} sc1"
pl = []
for j in range(6): pl.append(('lg', f"ds_read_b64 {vr(92+2*(j%3),2) if False else vr(20+2*j,2)}, v10 offset:{32*j}", "xr"))
for j in range(6): pl.append(('lg', f"ds_read_b128 {vr(204+4*j,4)}, v9 offset:{6*384+64*j}", "cc"))
for j in range(6): pl.append(('lg', f"ds_read_b128 {vr(180+4*j,4)}, v9 offset:{64*j}", "cc"))
for ks in range(20):
    for j in range(3): pl += btr(lambda o: ar((ks*3+j)*4+o, 2), ks, j, "bp")
for j in range(3): pl += btr(lambda o: vr(44+4*j+o, 2), 0, 3+j, "b0")
for n, it in enumerate(pl):
    if n == P["odelay"]:
        for ks in range(20): g.vm(oload(ks), f"o{ks//5}")
    if n == 34:
        g.wait(lg="cc")
        for k in range(12): g(f"v_lshlrev_b32 v{68+2*k}, 16, v{20+k}\nv_and_b32 v{69+2*k}, 0xffff0000, v{20+k}")
        g("v_pk_add_f32 v[94:95], v[204:205], v[206:207]")
        for k in range(2, 12): g(f"v_pk_add_f32 v[94:95], v[94:95], v[{204+2*k}:{205+2*k}]")
        g("v_add_f32 v95, v94, v95")
    g.item(it)
def ocheck(n):
    b = 100 + 20*n
    g(f"v_max3_u32 v92, v{b}, v{b+1}, v{b+2}\nv_max3_u32 v93, v{b+3}, v{b+4}, v{b+5}")
    for k in range(7): g(f"v_max3_u32 v{92+(k&1)}, v{92+(k&1)}, v{b+6+2*k}, v{b+7+2*k}")
    g("v_max_u32 v92, v92, v93\nv_cmp_eq_u32 vcc, -1, v92")
for ks in range(20):
    if ks % 5 == 0:
        n = ks//5
        g.wait(vm=f"o{n}")
        ocheck(n)
        if n == 0: TS(9)
        g(f"s_cbranch_vccnz L_o{n}_retry\nL_o{n}_ok:")
        save = g.l; g.l = []
        g(f"L_o{n}_retry:")
        for k in range(ks, ks+5): g(oload(k))
        g("s_waitcnt vmcnt(0)"); ocheck(n); spin(f"L_o{n}_retry", f"L_o{n}_ok"); g(f"s_branch L_o{n}_ok")
        ool.append(g.l); g.l = save
    sb = 44 + 12*(ks & 1); nb = 44 + 12*((ks+1) & 1)
    mf = []
    for j in range(6):
        A = ar((ks*3+j)*4, 4) if j < 3 else vr(sb+4*(j-3), 4)
        d = vr(20+4*j, 4)
        mf.append(f"v_mfma_f32_16x16x32_bf16 {d}, {A}, {vr(100+4*ks,4)}, {d if ks else 0}")
    mem = {}; pre = {}
    if ks == 0: pre[0] = [('wait', None, "bp")]
    if ks < 19:
        its = []
        for j in range(3): its += btr(lambda o: vr(nb+4*j+o, 2), ks+1, 3+j, f"b{ks+1}")
        for k, it in enumerate(its): mem[k] = [it]
    pre[3] = [('wait', None, f"b{ks}")]
    gaps(g, mf, mem, [], pre)
TS(10)
for v, b in ((2, 100), (1, 124), (3, 148)):
    for j in range(6): g.lg(f"ds_read_b128 {vr(b+4*j,4)}, v9 offset:{v*384+64*j}", "m2")
pk = lambda b, k: f"v[{b+2*k}:{b+2*k+1}]"
for k in range(12): g(f"v_pk_fma_f32 {pk(20,k)}, {pk(20,k)}, {pk(180,k)}, {pk(68,k)}")
g(f"v_pk_mul_f32 v[46:47], {pk(20,0)}, {pk(20,0)}\nv_pk_mul_f32 v[48:49], {pk(20,0)}, {pk(204,0)}\nv_pk_add_f32 v[44:45], {pk(20,0)}, {pk(20,1)}")
for k in range(1, 12):
    g(f"v_pk_fma_f32 v[46:47], {pk(20,k)}, {pk(20,k)}, v[46:47]\nv_pk_fma_f32 v[48:49], {pk(20,k)}, {pk(204,k)}, v[48:49]")
    if k > 1: g(f"v_pk_add_f32 v[44:45], v[44:45], {pk(20,k)}")
g(f"""v_add_f32 v44, v44, v45
v_add_f32 v46, v46, v47
v_add_f32 v48, v48, v49
s_lshl_b32 s56, s53, 11
s_add_u32 s56, s56, {STATS}
s_lshl_b32 s57, s{sCG}, 8
s_add_u32 s57, s57, s56
v_permlane32_swap_b32 v44, v46
v_permlane32_swap_b32 v48, v95
v_add_f32 v44, v44, v46
v_add_f32 v48, v48, v95
s_mov_b32 s55, 0xffffff00
v_permlane16_swap_b32 v44, v48
v_add_f32 v44, v44, v48
v_and_or_b32 v44, v44, s55, v19""")
g.vm(f"buffer_store_dword v44, v12, {srd(sWS)}, s57 offen sc1", "st")
TS(11)
for _ in range(P["adelay"]): g("s_sleep 1")
g("L_st_poll:")
for k in range(7): g(f"buffer_load_dword v{44+k}, v12, {srd(sWS)}, s56 offen offset:{256*k} sc1")
g("s_waitcnt vmcnt(0)"); g.vmq[:] = []
g("v_xor_b32 v52, v44, v19")
for k in range(1, 7): g(f"v_bitop3_b32 v52, v52, v{44+k}, v19 bitop3:0xf6")
g("v_and_b32 v52, 0xff, v52\nv_cmp_ne_u32 vcc, 0, v52")
spin("L_st_poll", "L_st_ok")
g("L_st_ok:")
TS(12)
for k in range(7): g(f"v_and_b32 v{44+k}, s55, v{44+k}")
g(f"""v_add_f32 v44, v44, v45
v_add_f32 v46, v46, v47
v_add_f32 v48, v48, v49
v_add_f32 v44, v44, v50
v_add_f32 v46, v46, v48
v_add_f32 v44, v44, v46
v_mov_b32 v46, v44
v_permlane32_swap_b32 v44, v46
v_mov_b32 v45, v44
v_mov_b32 v47, v46
v_permlane16_swap_b32 v44, v45
v_permlane16_swap_b32 v46, v47
v_mul_f32 v44, 0x3acccccd, v44
v_mul_f32 v46, 0x3acccccd, v46
v_fma_f32 v46, -v44, v44, v46
v_max_f32 v46, 0, v46
v_add_f32 v46, 0x3727c5ac, v46
v_rsq_f32 v48, v46
v_fma_f32 v45, -v44, v47, v45
v_mul_f32 v45, v45, v48
v_mul_f32 v49, -v44, v48
s_lshl_b32 s57, s3, 2
s_add_u32 s57, s57, {AM}
v_max_f32_dpp v46, v45, v45 row_ror:8 {DPP}
v_mov_b32 v50, s57
v_and_b32 v51, 12, v12
v_max_f32_dpp v46, v46, v46 row_ror:4 {DPP}
v_add_u32 v51, {AM}, v51
v_max_f32_dpp v46, v46, v46 row_ror:2 {DPP}
v_max_f32_dpp v46, v46, v46 row_ror:1 {DPP}""")
g.lg("ds_write_b32 v50, v46", "am")
for k in range(12): g(f"v_pk_fma_f32 {pk(68,k)}, {pk(20,k)}, v[48:49], v[48:49] op_sel:[0,0,1] op_sel_hi:[1,0,1]")
g.wait(lg="*"); g("s_barrier")
g.lg("ds_read_b32 v52, v51", "am")
for k in range(12): g(f"v_pk_fma_f32 {pk(68,k)}, {pk(68,k)}, {pk(100,k)}, {pk(124,k)}")
g.wait(lg="*")
g(f"""v_max_f32_dpp v53, v52, v52 quad_perm:[1,0,3,2] {DPP}
v_max_f32_dpp v53, v53, v53 quad_perm:[2,3,0,1] {DPP}
v_cmp_eq_f32 vcc, v53, v52
v_cmp_eq_f32 s[58:59], v53, v45
s_ff1_i32_b64 s57, vcc
s_and_b32 s57, s57, 3
s_cmp_eq_u32 s57, s3
s_cbranch_scc0 L_nowin
s_ff1_i32_b64 s57, s[58:59]
s_and_b32 s57, s57, 15
s_cmp_eq_u32 s{sCG}, 0
s_cbranch_scc0 L_nocand
s_lshl_b32 s58, s57, 1
s_add_u32 s58, s58, s54
v_mov_b32 v56, v53
v_mov_b32 v57, s58
v_mov_b32 v58, s{sTAG}
v_mov_b32 v59, s53
s_lshl_b32 s58, s{sRB3}, 7
s_add_u32 s58, s58, {CAND}
s_mov_b64 exec, 0xff
buffer_store_dwordx4 v[56:59], v8, {srd(sWS)}, s58 offen sc1
L_nocand:
s_mov_b32 s58, 0x00010001
s_lshl_b32 exec_lo, s58, s57
s_lshl_b32 exec_hi, s58, s57
s_lshl_b32 s58, s{sRB3}, 11
s_lshl_b32 s59, s{sCG}, 8
s_add_u32 s58, s58, s59
s_lshl_b32 s59, s58, 1
s_add_u32 s58, s58, {CROW}
s_add_u32 s59, s59, {CBASE}
v_lshlrev_b32 v54, 3, v3
v_lshlrev_b32 v55, 4, v3""")
for j in range(6):
    g(f"v_cvt_pk_bf16_f32 v{172+2*(j%4)}, v{68+4*j}, v{69+4*j}\nv_cvt_pk_bf16_f32 v{173+2*(j%4)}, v{70+4*j}, v{71+4*j}")
    g(f"buffer_store_dwordx2 {vr(172+2*(j%4),2)}, v54, {srd(sWS)}, s58 offen offset:{32*j} sc1")
g(f"s_and_b32 s60, s{sTAG}, 0xff\ns_bfe_u32 s61, s{sTAG}, 0x80008\ns_bfe_u32 s62, s{sTAG}, 0x80010\ns_lshr_b32 s63, s{sTAG}, 24\nv_mov_b32 v60, s55")
for j in range(6):
    for h in range(2): g(f"v_pk_fma_f32 {pk(100,2*j+h)}, {pk(68,2*j+h)}, {pk(148,2*j+h)}, {pk(20,2*j+h)}")
    for r in range(4): g(f"v_and_or_b32 v{100+4*j+r}, v{100+4*j+r}, v60, s{60+r}")
    g(f"buffer_store_dwordx4 {vr(100+4*j,4)}, v55, {srd(sWS)}, s59 offen offset:{64*j} sc1")
g("s_mov_b64 exec, -1\nL_nowin:")
TS(13)
for j in range(6):
    for h in range(2): g(f"v_pk_fma_f32 {pk(20,2*j+h)}, {pk(68,2*j+h)}, {pk(148,2*j+h)}, {pk(20,2*j+h)}")
    g(f"v_cvt_pk_bf16_f32 v{20+4*j}, v{20+4*j}, v{21+4*j}\nv_cvt_pk_bf16_f32 v{21+4*j}, v{22+4*j}, v{23+4*j}")
    g.lg(f"ds_write_b64 v10, {vr(20+4*j,2)} offset:{32*j}", "ow")
g.wait(lg="*")
for k in range(3): g.lg(f"ds_read_b128 {vr(44+4*k,4)}, v11 offset:{1024*k}", f"r{k}")
for k in range(3):
    g.wait(lg=f"r{k}")
    g(f"buffer_store_dwordx4 {vr(44+4*k,4)}, v{235+k}, {srd(sOUT)}, s50 offen sc1")
g(f"""s_lshl_b32 s56, s53, 3
s_add_u32 s56, s56, s{sCG}
s_lshl_b32 s56, s56, 4
s_add_u32 s56, s56, {OUTD}
v_mov_b32 v20, s{sTAG}
s_mov_b64 exec, 1
s_waitcnt vmcnt(0)
buffer_store_dword v20, v12, {srd(sWS)}, s56 offen sc1
s_mov_b64 exec, -1""")
TS(14)
g("s_branch L_fin")
for b in ool: g.l += b
ool[:] = []

sWG, sWU, sWD = sX, sWQ, sPZ
g(f"""L_svc0:
buffer_load_dword v42, v29, {srd(sWS)}, 0 offen sc1
s_waitcnt vmcnt(0)
v_readfirstlane_b32 s{sE}, v42
v_and_b32 v31, 3, v1
s_mul_i32 s{sTAG}, s{sE}, 0x9E3779B1
s_add_u32 s{sTAG}, s{sTAG}, 0x85EBCA6B
v_lshlrev_b32 v30, 3, v31
v_lshrrev_b32 v19, v30, s{sTAG}
v_and_b32 v19, 0xff, v19
L_svc1:
s_load_dwordx2 s[{sWG}:{sWG+1}], s[0:1], 40
s_load_dwordx2 s[{sWU}:{sWU+1}], s[0:1], 48
s_load_dwordx2 s[{sWD}:{sWD+1}], s[0:1], 56
v_lshlrev_b32 v28, 3, v0
buffer_load_dwordx2 v[40:41], v28, {srd(sC)}, 0 offen
s_sub_u32 s44, s2, 224
v_lshrrev_b32 v30, 3, v1
v_and_b32 v31, 7, v1
v_lshlrev_b32 v31, 4, v31
v_mad_u32_u24 v4, v30, 60, 0
v_lshl_add_u32 v4, v4, 7, v31
v_mad_u32_u24 v5, v30, 27, 0
v_lshl_add_u32 v5, v5, 7, v31
v_lshlrev_b32 v8, 4, v1
v_lshlrev_b32 v12, 2, v1
v_bfe_u32 v30, v1, 2, 2
v_lshl_add_u32 v30, v3, 3, v30
v_and_b32 v31, 3, v1
v_lshlrev_b32 v31, 3, v31
s_lshl_b32 s55, s3, 5
v_lshlrev_b32 v32, 7, v30
v_add3_u32 v6, v32, v31, s55
v_add_u32 v7, 40960, v6
v_add_u32 v9, 81920, v6
v_add_u32 v10, 81920+40960, v6
s_mul_i32 s55, s3, 320
s_add_u32 s55, s55, 81920
v_mul_u32_u24 v32, 1280, v30
v_add3_u32 v11, v32, v31, s55
v_and_b32 v30, 1, v1
v_lshlrev_b32 v30, 4, v30
v_lshrrev_b32 v13, v30, s{sTAG}
v_and_b32 v13, 0xffff, v13
v_mov_b32 v255, {OOB}
s_lshl_b32 s49, s3, 10
s_waitcnt vmcnt(0) lgkmcnt(0)
s_mov_b32 s{sWG+2}, 2211840
s_mov_b32 s{sWU+2}, 2211840
s_mov_b32 s{sWD+2}, 2211840""")
g.vmq[:] = []; g.lgq[:] = []
g("v_lshlrev_b32 v44, 16, v40\nv_and_b32 v45, 0xffff0000, v40\nv_lshlrev_b32 v46, 16, v41\nv_and_b32 v47, 0xffff0000, v41")
for k in range(4): silu(44+k, 48)
g(f"v_cvt_pk_bf16_f32 v40, v44, v45\nv_cvt_pk_bf16_f32 v41, v46, v47\nv_add_u32 v28, 100000-160, v28\nds_write_b64 v28, v[40:41]\nv_lshlrev_b32 v28, 4, v3\nv_add_u32 v28, 100000-160, v28\ns_waitcnt lgkmcnt(0)\ns_barrier")
for ks in range(20): g(f"ds_read_b128 {vr(100+4*ks,4)}, v28 offset:{64*ks}")
g("s_waitcnt lgkmcnt(0)\ns_barrier")
def tile_dma(half, sr, voff, s_src, step, tag, flags="nt"):
    g(f"s_add_u32 m0, s49, {half*81920}")
    for n in range(20):
        g.vm(f"buffer_load_dwordx4 v{voff}, {srd(sr)}, s{s_src} offen {flags} lds", tag)
        if n < 19: g(f"s_add_u32 m0, m0, 4096\ns_add_u32 s{s_src}, s{s_src}, {4*step}")
def tile_tr(half, dst):
    for ks in range(20):
        for hh in range(2):
            g(f"ds_read_b64_tr_b16 {dst(4*ks+2*hh)}, v{(6,9)[half] + (ks >= 10)} offset:{(ks%10)*4096+hh*512}")
def mod_src(sunit):
    g(f"s_lshl_b32 s50, s{sunit}, 7\ns_mul_i32 s55, s3, {8*7680}\ns_add_u32 s50, s50, s55\ns_add_u32 s50, s50, 2560")
def mod_consume(half, sunit):
    tile_tr(half, lambda o: vr(20+o, 2))
    g("s_waitcnt lgkmcnt(0)\ns_barrier")
    for ks in range(20): g(f"v_mfma_f32_16x16x32_bf16 v[180:183], {vr(100+4*ks,4)}, {vr(20+4*ks,4)}, {'v[180:183]' if ks else 0}")
    g(f"""s_sub_u32 s55, s{sunit}, 20
s_cmp_lt_u32 s55, 10
s_cselect_b32 s55, 1.0, 0
s_lshl_b32 s56, s{sunit}, 8
s_lshl_b32 s57, s3, 6
s_add_u32 s56, s56, s57
s_add_u32 s56, s56, {MOD2}
v_cvt_pk_bf16_f32 v180, v180, v180
v_lshlrev_b32 v180, 16, v180
v_add_f32 v180, s55, v180
v_cvt_pk_bf16_f32 v180, v180, v180
v_lshl_or_b32 v180, v180, 16, v13
s_mov_b64 exec, 0xffff""")
    g.vm(f"buffer_store_dword v180, v12, {srd(sWS)}, s56 offen sc1", "m2s")
    g("s_mov_b64 exec, -1")
def wo_pull():
    if not P["wopull"]: return
    g(f"s_sub_u32 s55, s{sI}, 28\ns_lshl_b32 s55, s55, 2\ns_add_u32 s55, s55, s3\ns_mul_i32 s55, s55, {448*128}\nv_lshlrev_b32 v30, 7, v1")
    for n in range(7):
        g.vm(f"buffer_load_dword v{184+n}, v30, {srd(sWO)}, s55 offen", "wp")
        g("s_add_u32 s55, s55, 8192")
def cand_poll(L):
    g(f"""v_and_b32 v30, 31, v1
v_lshlrev_b32 v30, 7, v30
s_mov_b32 s55, {CAND}
{L}_cp:
buffer_load_dwordx4 v[20:23], v30, {srd(sWS)}, s55 offen sc1
s_waitcnt vmcnt(0)
v_cmp_ne_u32 vcc, s{sTAG}, v22""")
    spin(f"{L}_cp", f"{L}_cok")
    g(f"""{L}_cok:
v_max_f32_dpp v24, v20, v20 row_ror:8 {DPP}
v_max_f32_dpp v24, v24, v24 row_ror:4 {DPP}
v_max_f32_dpp v24, v24, v24 row_ror:2 {DPP}
v_max_f32_dpp v24, v24, v24 row_ror:1 {DPP}
v_mov_b32 v25, v24
v_permlane16_swap_b32 v24, v25
v_max_f32 v24, v24, v25
v_cmp_eq_f32 vcc, v24, v20
s_ff1_i32_b64 s45, vcc
s_and_b32 s45, s45, 31""")
g("s_cmp_ge_u32 s44, 27\ns_cbranch_scc1 L_fz")
mod_src(44); tile_dma(0, sWM, 4, 50, 8*7680, "t0")
g(f"s_lshl_b32 s51, s44, 7\ns_mul_i32 s55, s3, {8*3456}\ns_add_u32 s51, s51, s55\ns_mov_b32 s52, s51")
wo_pull()
tile_dma(1, sWG, 5, 51, 8*3456, "t1")
g.wait(vm="t0"); g("s_barrier")
mod_consume(0, 44)
tile_dma(0, sWU, 5, 52, 8*3456, "t2")
g.wait(vm="t1"); g("s_barrier")
tile_tr(1, lambda o: ar(o, 2)); g("s_waitcnt lgkmcnt(0)\ns_barrier")
g("s_mul_i32 s51, s44, 81920\ns_add_u32 s51, s51, s49")
tile_dma(1, sWD, 8, 51, 1024, "t3")
g.wait(vm="t2"); g("s_barrier")
tile_tr(0, lambda o: ar(80+o, 2))
g("s_waitcnt vmcnt(0) lgkmcnt(0)\ns_barrier"); g.vmq[:] = []
for t in range(10):
    for ks in range(2):
        for hh in range(2): g(f"ds_read_b64_tr_b16 {ar(160+(t*2+ks)*4+2*hh,2)}, v11 offset:{ks*40960+hh*5120+t*32}")
g(f"""s_waitcnt lgkmcnt(0)
v_mov_b32 v20, 0
ds_write_b32 v12, v20 offset:8192
v_mul_u32_u24 v30, 5462, v1
v_lshrrev_b32 v30, 16, v30
v_lshl_add_u32 v14, v30, 6, v8
v_add_u32 v31, 64, v1
v_mul_u32_u24 v30, 5462, v31
v_lshrrev_b32 v30, 16, v30
v_lshlrev_b32 v31, 4, v31
v_lshl_add_u32 v15, v30, 6, v31
v_cmp_gt_u32 vcc, 16, v1
s_lshl_b32 s55, s3, 11
v_add_u32 v16, s55, v8
v_cndmask_b32 v15, v255, v15, vcc
v_lshl_add_u32 v17, v3, 4, s55
s_lshl_b32 s55, s3, 5
v_lshl_add_u32 v18, v2, 1, s55
v_lshrrev_b32 v30, 2, v2
v_lshlrev_b32 v31, 4, v3
v_add_u32 v32, 128, v31""")
for q in range(4): g(f"v_cmp_eq_u32 vcc, {q}, v30\nv_cndmask_b32 v{232+q}, v32, v31, vcc")
g(f"""v_lshrrev_b32 v30, 5, v1
v_and_b32 v31, 31, v1
v_lshlrev_b32 v31, 2, v31
v_lshl_add_u32 v236, v30, 12, v31
v_cmp_gt_u32 vcc, 32, v1
s_mul_i32 s46, s3, {5*4096}
s_lshl_b32 s55, s44, 7
s_add_u32 s46, s46, s55
s_add_u32 s46, s46, {YP}
v_cndmask_b32 v237, v255, v236, vcc
s_add_u32 s47, s46, 8192
s_add_u32 s48, s46, 16384
s_mov_b32 s54, 0xffffff00
s_waitcnt lgkmcnt(0)
s_barrier""")
TS(3)
cand_poll("L_m")
TS(4)
g(f"""s_lshl_b32 s55, s45, 11
s_add_u32 s55, s55, {CROW}
L_m_rp:
buffer_load_dwordx4 v[20:23], v14, {srd(sWS)}, s55 offen sc1
buffer_load_dwordx4 v[24:27], v15, {srd(sWS)}, s55 offen sc1
s_waitcnt vmcnt(0)
ds_write_b128 v16, v[20:23]
ds_write_b128 v16, v[24:27] offset:1024
v_max3_u32 v28, v20, v21, v22
v_max3_u32 v29, v23, v24, v25
v_max3_u32 v28, v28, v26, v27
v_max_u32 v28, v28, v29
v_cmp_eq_u32 vcc, -1, v28""")
spin("L_m_rp", "L_m_rok")
g("L_m_rok:")
TS(5)
g.lgq[:] = []
for ks in range(6): g.lg(f"ds_read_b128 {vr(100+4*ks,4)}, v17 offset:{64*ks}", f"x{ks}")
mf = []; mem = {}; pre = {}
for ks in range(20):
    pre[2*ks] = [('wait', None, f"x{ks}")]
    mf += [f"v_mfma_f32_16x16x32_bf16 v[32:35], {vr(100+4*ks,4)}, {ar(4*ks,4)}, {'v[32:35]' if ks else 0}",
           f"v_mfma_f32_16x16x32_bf16 v[36:39], {vr(100+4*ks,4)}, {ar(80+4*ks,4)}, {'v[36:39]' if ks else 0}"]
    if ks + 6 < 20: mem[2*ks] = [('lg', f"ds_read_b128 {vr(100+4*(ks+6),4)}, v17 offset:{64*(ks+6)}", f"x{ks+6}")]
gaps(g, mf, mem, [], pre)
silu(32, 33)
g("v_mul_f32 v32, v32, v36\nv_cvt_pk_bf16_f32 v32, v32, v32\nds_write_b16 v18, v32 offset:8192\ns_waitcnt lgkmcnt(0)\ns_barrier")
g.lgq[:] = []
for q in range(4):
    for ks in range(2): g.lg(f"ds_read_b128 {vr(40+(q*2+ks)*4,4)}, v{232+q} offset:{8192+64*ks}", f"q{q}")
for t in range(10):
    if t < 4: g.wait(lg=f"q{t}")
    d = vr(20+4*(t//4), 4)
    for ks in range(2):
        g(f"v_mfma_f32_16x16x32_bf16 {d}, {vr(40+((t%4)*2+ks)*4,4)}, {ar(160+(t*2+ks)*4,4)}, {d if (t%4 or ks) else 0}")
for a in range(3):
    g(f"v_and_or_b32 v{20+4*a}, v{20+4*a}, s54, v19\nbuffer_store_dword v{20+4*a}, v{237 if a==2 else 236}, {srd(sWS)}, s{46+a} offen sc1")
TS(6)
g("s_branch L_fin")
g("L_fz:")
g.vmq[:] = []
wo_pull()
g(f"s_mov_b32 s46, s44\nbuffer_load_dword v191, v12, {srd(sOUT)}, 0 offen\ns_mov_b32 s55, 2621184\nbuffer_load_dword v192, v12, {srd(sOUT)}, s55 offen\nL_fz_u:")
mod_src(46); tile_dma(0, sWM, 4, 50, 8*7680, "t0")
g("s_waitcnt vmcnt(0)\ns_barrier")
mod_consume(0, 46)
g("s_add_u32 s46, s46, 5\ns_cmp_lt_u32 s46, 40\ns_cbranch_scc1 L_fz_u")
g.vmq[:] = []
g(f"""s_sub_u32 s46, s44, 27
s_lshl_b32 s46, s46, 2
s_add_u32 s46, s46, s3
v_cmp_gt_u32 vcc, 32, v1
v_lshlrev_b32 v14, 3, v1
v_and_b32 v15, 7, v1
v_cndmask_b32 v16, v255, v8, vcc
v_cndmask_b32 v250, 0, -1, vcc
v_lshlrev_b32 v15, 4, v15
s_mov_b32 s55, {MOD2+2560}
s_lshl_b32 s56, s46, 7
s_add_u32 s56, s56, {MOD2+3*2560}
s_mov_b32 s57, 0x05040100
buffer_load_dwordx2 v[44:45], v14, {srd(sWR)}, 0 offen
buffer_load_dwordx2 v[46:47], v14, {srd(sWR)}, 0 offen offset:512
buffer_load_dwordx2 v[48:49], v14, {srd(sWR)}, 0 offen offset:1024
L_fz_mp:
buffer_load_dwordx4 v[20:23], v8, {srd(sWS)}, s55 offen sc1
buffer_load_dwordx4 v[24:27], v8, {srd(sWS)}, s55 offen offset:1024 sc1
buffer_load_dwordx4 v[28:31], v16, {srd(sWS)}, s55 offen offset:2048 sc1
buffer_load_dwordx4 v[56:59], v15, {srd(sWS)}, s56 offen sc1
s_waitcnt vmcnt(0)""")
for n, b in enumerate((28, 20, 24, 56)):
    g(f"v_perm_b32 v32, v{b+1}, v{b}, s57\nv_perm_b32 v33, v{b+3}, v{b+2}, s57\nv_xor_b32 v32, s{sTAG}, v32\nv_xor_b32 v33, s{sTAG}, v33")
    g("v_or_b32 v34, v32, v33\nv_and_b32 v34, v34, v250" if n == 0 else "v_or3_b32 v34, v34, v32, v33")
g("v_cmp_ne_u32 vcc, 0, v34\ns_sleep 4")
spin("L_fz_mp", "L_fz_mok")
g("L_fz_mok:\nv_mov_b32 v60, 0")
for k in range(4): g(f"v_and_b32 v{56+k}, 0xffff0000, v{56+k}")
for k in range(12):
    g(f"v_and_b32 v{20+k}, 0xffff0000, v{20+k}")
    g(f"v_lshlrev_b32 v32, 16, v{44+k//2}" if k % 2 == 0 else f"v_and_b32 v32, 0xffff0000, v{44+k//2}")
    g(f"v_fmac_f32 v60, v{20+k}, v32")
for r in (8, 4, 2, 1): g(f"v_add_f32_dpp v60, v60, v60 row_ror:{r} {DPP}")
g("v_mov_b32 v61, v60\nv_permlane16_swap_b32 v60, v61\nv_add_f32 v60, v60, v61\nv_mov_b32 v61, v60\nv_permlane32_swap_b32 v60, v61\nv_add_f32 v60, v60, v61")
g(f"""v_cmp_gt_u32 vcc, 24, v1
s_mul_i32 s47, s46, 86
s_lshr_b32 s47, s47, 8
v_cndmask_b32 v17, v255, v8, vcc
v_cndmask_b32 v250, 0, -1, vcc
s_lshl_b32 s48, s46, 12
s_add_u32 s48, s48, {YP}
v_mov_b32 v18, 0""")
assert all((f*86 >> 8) == f//3 for f in range(20))
TS(3)
cand_poll("L_f")
TS(4)
g(f"""v_readlane_b32 s50, v21, s45
v_readlane_b32 s51, v23, s45
v_add_f32 v60, v60, v24
v_cvt_pk_bf16_f32 v60, v60, v60
v_lshlrev_b32 v60, 16, v60
v_mul_f32 v60, 0xbfb8aa3b, v60
v_exp_f32 v60, v60
s_lshl_b32 s55, s45, 12
s_add_u32 s56, s46, s47
s_lshl_b32 s56, s56, 7
s_add_u32 s55, s55, s56
s_add_u32 s55, s55, {CBASE}
s_and_b32 s51, s51, 127
s_lshl_b32 s56, s51, 3
s_add_u32 s56, s56, s47
s_lshl_b32 s56, s56, 4
s_add_u32 s56, s56, {OUTD}
v_add_f32 v60, 1.0, v60
v_rcp_f32 v60, v60
s_and_b32 s50, s50, 2047
s_mul_i32 s50, s50, 1280
s_lshl_b32 s57, s46, 6
s_add_u32 s50, s50, s57
v_mul_f32 v56, v56, v60
v_mul_f32 v57, v57, v60
v_mul_f32 v58, v58, v60
v_mul_f32 v59, v59, v60
L_fz_bp:
buffer_load_dwordx4 v[52:55], v15, {srd(sWS)}, s55 offen sc1
buffer_load_dword v62, v18, {srd(sWS)}, s56 offen sc1
s_waitcnt vmcnt(0)
v_perm_b32 v32, v53, v52, s{sPA}
v_perm_b32 v33, v55, v54, s{sPB}
v_bitop3_b32 v32, v32, v33, s{sTAG} bitop3:0x56
v_xor_b32 v33, s{sTAG}, v62
v_or_b32 v32, v32, v33
v_cmp_ne_u32 vcc, 0, v32""")
spin("L_fz_bp", "L_fz_bok")
g("L_fz_bok:\ns_mov_b32 s55, 0xffffff00")
for k in range(4): g(f"v_and_b32 v{52+k}, s55, v{52+k}")
TS(5)
g("L_fz_yp:")
for n in range(4): g(f"buffer_load_dwordx4 {vr(20+4*n,4)}, v{17 if n==3 else 8}, {srd(sWS)}, s48 offen offset:{1024*n} sc1")
g("s_waitcnt vmcnt(0)")
for n in range(4):
    b = 20 + 4*n
    g(f"v_perm_b32 v36, v{b+1}, v{b}, s{sPA}\nv_perm_b32 v37, v{b+3}, v{b+2}, s{sPB}\nv_bitop3_b32 v{38+n}, v36, v37, s{sTAG} bitop3:0x56")
g("v_and_b32 v41, v41, v250\nv_or3_b32 v38, v38, v39, v40\nv_or_b32 v38, v38, v41\nv_cmp_ne_u32 vcc, 0, v38")
spin("L_fz_yp", "L_fz_yok")
g("L_fz_yok:")
TS(6)
for k in range(16): g(f"v_and_b32 v{20+k}, s55, v{20+k}")
g("v_pk_add_f32 v[20:21], v[20:21], v[24:25]\nv_pk_add_f32 v[22:23], v[22:23], v[26:27]\nv_pk_add_f32 v[28:29], v[28:29], v[32:33]\nv_pk_add_f32 v[30:31], v[30:31], v[34:35]\nv_pk_add_f32 v[20:21], v[20:21], v[28:29]\nv_pk_add_f32 v[22:23], v[22:23], v[30:31]")
for k in range(4): g(f"v_add_f32_dpp v{20+k}, v{20+k}, v{20+k} row_ror:8 {DPP}")
for sw in (16, 32):
    for k in range(4): g(f"v_mov_b32 v{24+k}, v{20+k}")
    for k in range(4): g(f"v_permlane{sw}_swap_b32 v{20+k}, v{24+k}")
    g("v_pk_add_f32 v[20:21], v[20:21], v[24:25]\nv_pk_add_f32 v[22:23], v[22:23], v[26:27]")
g(f"""v_pk_fma_f32 v[20:21], v[20:21], v[56:57], v[52:53]
v_pk_fma_f32 v[22:23], v[22:23], v[58:59], v[54:55]
v_cvt_pk_bf16_f32 v20, v20, v21
v_cvt_pk_bf16_f32 v21, v22, v23
s_mov_b64 exec, 0xff
buffer_store_dwordx2 v[20:21], v14, {srd(sOUT)}, s50 offen sc1
s_cmp_eq_u32 s46, 0
s_cbranch_scc0 L_fz_e
s_add_u32 s55, s{sE}, 1
v_mov_b32 v22, s55
s_mov_b64 exec, 1
buffer_store_dword v22, v18, {srd(sWS)}, 0 offen sc1
L_fz_e:
s_mov_b64 exec, -1""")
TS(7)
g("L_fin:")
if DEV:
    g("s_waitcnt vmcnt(0)")
    TS(15)
    g(f"s_waitcnt lgkmcnt(0)\ns_lshl_b32 s55, s2, 2\ns_add_u32 s55, s55, s3\ns_lshl_b32 s55, s55, 7\ns_add_u32 s55, s55, {TSB}\nv_mov_b32 v20, 0")
    for n in range(16): g(f"v_writelane_b32 v20, s{64+2*n}, {n}")
    g(f"v_writelane_b32 v20, s{sSPIN}, 16\nv_lshlrev_b32 v21, 2, v1\ns_mov_b64 exec, 0x1ffff\nbuffer_store_dword v20, v21, {srd(sWS)}, s55 offen")
g("L_end:\ns_endpgm")

lines, added = pad_hazards(g.l)
HDR = open("/code/" + NAME + ".s.ref").read().split("; Override launch")[0]
txt = HDR + f"""; generated by dev/gen.py {' '.join(sys.argv[2:])}
; @launch grid=(256,1,1) block=(256,1,1) lds=163840
.amdgcn_target "amdgcn-amd-amdhsa--gfx950"
.text
.globl {NAME}_kernel
.p2align 8
.type {NAME}_kernel,@function
{NAME}_kernel:
""" + "\n".join(lines) + f"""
.fill ({NAME}_kernel + 49664 - .) / 4, 4, 0xbf800000
.section .rodata,"a"
.p2align 6
.amdhsa_kernel {NAME}_kernel
  .amdhsa_next_free_vgpr 512
  .amdhsa_next_free_sgpr 102
  .amdhsa_accum_offset 256
  .amdhsa_group_segment_fixed_size 0
  .amdhsa_kernarg_size 104
  .amdhsa_user_sgpr_count 2
  .amdhsa_user_sgpr_kernarg_segment_ptr 1
  .amdhsa_system_sgpr_workgroup_id_x 1
  .amdhsa_float_denorm_mode_32 3
  .amdhsa_float_denorm_mode_16_64 3
.end_amdhsa_kernel
"""
open(sys.argv[1], "w").write(txt)
print(f"{len(lines)} lines, {added} pad states")
```

```python
import sys, struct, math
from gl import *
NAME = "adaLN_cond__sliding_local_dilated__moe_arch_mod__prompt"
P = dict(dev=0, lead=3, lpk=4, odelay=40, wopull=1, spin=1 << 16, adelay=0, probe=-1, pwg=-1, wsc1=1)
for a in sys.argv[2:]:
    k, v = a.split("="); P[k] = int(v)
DEV = P["dev"]
f2u = lambda f: struct.unpack("<I", struct.pack("<f", f))[0]

PUB1, MOD2, STATS, CAND, CROW, CBASE, OUTD, YP, WPP, OPP, TSB = 0x1000, 0x10000, 0x20000, 0x60000, 0x70000, 0x80000, 0xA0000, 0xB0000, 0x100000, 0x400000, 0x700000
WSZ = 0x800000
OOB = 0x40000000
GS, OST, XR, MV, AM = 122880, 128000, 142080, 155392, 158464
WST, MST, CST = 61440, 61440 + 12288, 61440 + 12288 + 7168
sWS, sX, sWQ, sWM, sC, sWO, sWR, sOUT, sPZ = 4, 8, 12, 16, 20, 24, 28, 32, 36
sTAG, sE, sXC, sI, sHG, sXB, sOB, sRB3, sCG = 40, 41, 42, 43, 44, 45, 46, 47, 96
sSPIN, sPA, sPB = 97, 98, 99
srd = lambda s: f"s[{s}:{s+3}]"
g = G()
nts = [0]
def TS(n):
    if DEV: g(f"s_memrealtime s[{64+2*n}:{65+2*n}]")
def vr(b, n): return f"v[{b}:{b+n-1}]" if n > 1 else f"v{b}"
def ar(b, n): return f"a[{b}:{b+n-1}]"
def spin(lab_back, lab_out):
    g(f"s_add_u32 s{sSPIN}, s{sSPIN}, 1\ns_cmp_gt_u32 s{sSPIN}, {P['spin']}\ns_cbranch_scc1 {lab_out}\ns_cbranch_vccnz {lab_back}")
def silu(v, t):
    g(f"v_mul_f32 v{t}, 0xbfb8aa3b, v{v}\nv_exp_f32 v{t}, v{t}\nv_add_f32 v{t}, 1.0, v{t}\nv_rcp_f32 v{t}, v{t}\nv_mul_f32 v{v}, v{v}, v{t}")
DPP = "row_mask:0xf bank_mask:0xf"
ool = []

g("s_cmp_ge_u32 s2, 256\ns_cbranch_scc1 L_end")
TS(0)
for s, off in ((sWS, 96), (sWQ, 8), (sWM, 72), (sC, 64), (sX, 0), (sWO, 16), (sWR, 32), (sOUT, 80)):
    g(f"s_load_dwordx2 s[{s}:{s+1}], s[0:1], {off}")
g(f"""s_getpc_b64 s[48:49]
v_lshrrev_b32 v4, 6, v0
v_and_b32 v1, 63, v0
v_readfirstlane_b32 s3, v4
s_and_b32 s{sXC}, s2, 7
s_lshr_b32 s{sI}, s2, 3
s_lshl_b32 s50, s{sI}, 2
s_add_u32 s50, s50, s3
s_mul_i32 s50, s50, 384
v_lshlrev_b32 v5, 7, v1
v_add_u32 v5, s50, v5
s_mov_b64 exec, 7""")
g.vm("global_load_dword v19, v5, s[48:49]", "pf")
g("s_mov_b64 exec, -1")
for s, sz in ((sWS, WSZ), (sWQ, 2457600), (sWM, 4915200), (sC, 1280), (sX, 2621440), (sWO, 819200), (sWR, 1280), (sOUT, 2621440), (sPZ, WSZ)):
    g(f"s_mov_b32 s{s+2}, {sz}\ns_mov_b32 s{s+3}, 0x20000")
g(f"""s_mov_b32 s{sSPIN}, 0
s_mov_b32 s{sPA}, 0x0c0c0400
s_mov_b32 s{sPB}, 0x04000c0c
v_and_b32 v2, 15, v1
v_lshrrev_b32 v3, 4, v1
s_cmp_lt_u32 s2, 224
s_cselect_b32 s{sX+2}, s{sX+2}, 0
s_cselect_b32 s{sPZ+2}, s{sPZ+2}, 0""")
g(f"""s_mul_i32 s55, s2, 10923
s_lshr_b32 s55, s55, 16
s_mul_i32 s56, s55, 6
s_sub_u32 s56, s2, s56
s_mul_i32 s50, s55, 61440
s_mul_i32 s57, s56, 640
s_add_u32 s50, s50, s57
s_lshr_b32 s57, s56, 1
s_and_b32 s56, s56, 1
s_lshl_b32 s56, s56, 2
s_add_u32 s56, s56, s3
s_mul_i32 s51, s56, 307200
s_mul_i32 s55, s55, 7680
s_mul_i32 s57, s57, 2560
s_add_u32 s51, s51, s55
s_add_u32 s51, s51, s57
s_add_u32 s51, s51, {WPP}
s_mul_i32 s55, s{sXC}, 30
s_add_u32 s55, s55, s{sI}
s_mul_i32 s56, s55, 820
s_lshr_b32 s56, s56, 16
s_mul_i32 s57, s56, 80
s_sub_u32 s57, s55, s57
s_mul_i32 s52, s56, {224*7680}
s_lshl_b32 s58, s57, 5
s_add_u32 s52, s52, s58
s_lshl_b32 s53, s55, 7
s_add_u32 s53, s53, {PUB1}
s_mul_i32 s54, s56, 448""")
assert all((i*820 >> 16) == i//80 for i in range(256)) and all((i*10923 >> 16) == i//6 for i in range(256))
assert all((u*1639 >> 16) == u//40 for u in range(768))
g(f"v_mov_b32 v26, {OOB}")
for n in range(3):
    g(f"""v_add_u32 v23, {256*n}, v0
v_mul_u32_u24 v24, 1639, v23
v_lshrrev_b32 v24, 16, v24
v_mul_u32_u24 v25, 3200, v24
v_lshl_add_u32 v{20+n}, v23, 4, v25""")
g("v_cmp_gt_u32 vcc, 128, v0\nv_cndmask_b32 v22, v26, v22, vcc")
g("v_lshrrev_b32 v27, 1, v1\nv_mul_u32_u24 v27, 7680, v27\nv_and_b32 v28, 1, v1\nv_lshl_add_u32 v27, v28, 4, v27\nv_lshlrev_b32 v28, 3, v1\nv_mov_b32 v29, 0")
g(f"s_lshl_b32 s59, s3, 10\ns_add_u32 s59, s59, {WST}")
g("s_waitcnt lgkmcnt(0)")
g(f"s_mov_b32 s{sPZ}, s{sWS}\ns_mov_b32 s{sPZ+1}, s{sWS+1}")
g("s_cmp_ge_u32 s2, 240\ns_cbranch_scc1 L_svc0")
g("s_cmp_eq_u32 s3, 3\ns_cbranch_scc1 L_p1b")

def xload(i):
    for c in range(5):
        g.vm(f"buffer_load_dwordx4 {vr(100+(i*5+c)*4,4)}, v4, {srd(sX)}, s{sXB} offen offset:{256*c}", f"x{i}")
    g(f"s_add_u32 s{sXB}, s{sXB}, 40960")

def main_addr():
    g(f"""s_lshr_b32 s55, s{sXC}, 2
s_bfe_u32 s56, s{sXC}, 0x10001
s_mul_i32 s56, s56, 7
s_lshr_b32 s57, s{sI}, 2
s_add_u32 s56, s56, s57
s_and_b32 s{sHG}, s{sXC}, 1
s_lshl_b32 s{sHG}, s{sHG}, 2
s_and_b32 s57, s{sI}, 3
s_add_u32 s{sHG}, s{sHG}, s57
s_mul_i32 s57, s56, 73
s_lshl_b32 s{sXB}, s57, 1
s_add_u32 s{sXB}, s{sXB}, s55
s_mul_i32 s{sXB}, s{sXB}, 1280
s_mul_i32 s58, s{sI}, 37
s_lshr_b32 s58, s58, 8
s_mul_i32 s60, s58, 7
s_sub_u32 s{sCG}, s{sI}, s60
s_lshl_b32 s{sRB3}, s{sXC}, 2
s_add_u32 s{sRB3}, s{sRB3}, s58
v_lshrrev_b32 v5, 4, v0
v_mul_u32_u24 v4, 2560, v5
v_lshl_add_u32 v4, v2, 4, v4""")
    assert all((i*37 >> 8) == i//7 for i in range(32))
    g(f"""s_cmp_eq_u32 s56, 0
s_cselect_b32 s58, 0, 7
s_add_u32 s58, s58, s57
s_add_u32 s60, s57, 80
s_min_u32 s60, s60, 1024
s_sub_u32 s60, s60, s58
s_andn2_b32 s61, s58, 15
s_lshl_b32 s62, s55, 10
s_add_u32 s62, s62, s61
s_mul_i32 s{sOB}, s62, 1280
s_mul_i32 s62, s{sHG}, 2560
s_add_u32 s{sOB}, s{sOB}, s62
s_add_u32 s{sOB}, s{sOB}, {OPP}
s_sub_u32 s62, s61, s58
s_sub_u32 s63, s58, s57""")
    assert all((v*410 >> 16) == v//160 for v in range(1024))
    for n in range(4):
        g(f"""v_add_u32 v30, {256*n}, v0
v_mul_u32_u24 v31, 410, v30
v_lshrrev_b32 v31, 16, v31
v_mul_u32_u24 v32, 17920, v31
v_lshl_add_u32 v32, v30, 4, v32
v_lshl_add_u32 v33, v31, 4, v2
v_add_u32 v33, s62, v33
v_cmp_gt_u32 vcc, s60, v33
v_add_u32 v33, s63, v33
v_mul_u32_u24 v34, 160, v31
v_cndmask_b32 v{11+n}, v26, v32, vcc
v_cndmask_b32 v33, 0, v33, vcc
v_sub_u32 v34, v30, v34
v_and_b32 v34, 0xf0, v34
v_mul_u32_u24 v33, 176, v33
v_add_u32 v{15+n}, v33, v34""")
    g(f"""s_lshl_b32 s62, s{sRB3}, 11
s_lshl_b32 s63, s{sCG}, 8
s_add_u32 s62, s62, s63
s_lshl_b32 s63, s3, 6
s_add_u32 s62, s62, s63
s_add_u32 s62, s62, {CROW}
v_lshlrev_b32 v35, 4, v1
v_cmp_gt_u32 vcc, 4, v1
v_mov_b32 v36, -1
v_mov_b32 v37, -1
v_cndmask_b32 v35, v26, v35, vcc
v_mov_b32 v38, -1
v_mov_b32 v39, -1""")

def phase1(B):
    g.vmq[:] = ["pf"]; g.lgq[:] = []
    if B: g.vm(f"buffer_load_dwordx2 v[40:41], v28, {srd(sC)}, s54 offen", "c")
    g.vm(f"buffer_load_dword v42, v29, {srd(sWS)}, 0 offen sc1", "E")
    for n in range(3):
        g(f"s_add_u32 m0, s59, {4096*n}")
        g.vm(f"buffer_load_dwordx4 v{20+n}, {srd(sWQ)}, s50 offen nt lds", "W")
    if B:
        for n in range(7):
            g(f"s_mov_b32 m0, {MST+1024*n}")
            g.vm(f"buffer_load_dwordx4 v27, {srd(sWM)}, s52 offen lds", "M")
            g(f"s_add_u32 s52, s52, {32*7680}")
    main_addr()
    for n in range(4):
        g.vm(f"buffer_store_dwordx4 v[36:39], v{11+n}, {srd(sPZ)}, s{sOB} offen sc1", "pz")
    g.vm(f"buffer_store_dwordx4 v[36:39], v35, {srd(sPZ)}, s62 offen sc1", "pz")
    xload(0)
    g(f"""v_bfe_u32 v30, v1, 2, 2
v_and_b32 v31, 3, v1
v_and_b32 v32, 1, v3
v_lshrrev_b32 v33, 1, v3
s_mul_i32 s55, s3, 160
s_add_u32 s55, s55, {WST}
v_lshl_add_u32 v34, v32, 3, v30
v_mul_u32_u24 v34, 640, v34
v_mul_u32_u24 v33, 40, v33
v_lshl_add_u32 v33, v31, 3, v33
v_add3_u32 v20, v34, v33, s55
v_and_b32 v33, 1, v31
v_lshl_add_u32 v34, v33, 3, v30
v_mul_u32_u24 v34, 640, v34
v_lshrrev_b32 v33, 1, v31
v_lshl_add_u32 v33, v32, 1, v33
v_mul_u32_u24 v33, 40, v33
v_add3_u32 v21, v34, v33, s55
v_lshlrev_b32 v22, 4, v1
v_cmp_gt_u32 vcc, 32, v1
v_lshlrev_b32 v24, 2, v1
v_lshl_add_u32 v25, v3, 3, v30
v_cndmask_b32 v23, v26, v22, vcc
v_cndmask_b32 v24, v26, v24, vcc
v_lshlrev_b32 v25, 5, v25
v_lshl_add_u32 v25, v31, 3, v25
v_add_u32 v25, {MST}, v25""")
    if not B: g("v_mov_b32 v24, v26")
    if B:
        g.wait(vm="c")
        g("v_lshlrev_b32 v44, 16, v40\nv_and_b32 v45, 0xffff0000, v40\nv_lshlrev_b32 v46, 16, v41\nv_and_b32 v47, 0xffff0000, v41")
        for k in range(4): g(f"v_mul_f32 v{48+k}, 0xbfb8aa3b, v{44+k}")
        for k in range(4): g(f"v_exp_f32 v{48+k}, v{48+k}")
        for k in range(4): g(f"v_add_f32 v{48+k}, 1.0, v{48+k}")
        for k in range(4): g(f"v_rcp_f32 v{48+k}, v{48+k}")
        for k in range(4): g(f"v_mul_f32 v{44+k}, v{44+k}, v{48+k}")
        g(f"v_cvt_pk_bf16_f32 v40, v44, v45\nv_cvt_pk_bf16_f32 v41, v46, v47\nv_add_u32 v28, {CST}, v28")
        g.lg("ds_write_b64 v28, v[40:41]", "cw")
        g(f"v_lshlrev_b32 v28, 4, v3\nv_add_u32 v28, {CST}, v28")
        g.wait(lg="cw")
        for ks in range(7): g.lg(f"ds_read_b128 {vr(200+4*ks,4)}, v28 offset:{64*ks}", "cf")
    g.wait(vm="W")
    g(f"v_readfirstlane_b32 s{sE}, v42")
    TS(1)
    g("s_barrier")
    for e, (a, off) in enumerate(((20, 0), (20, 80), (21, 32))):
        for hh in range(2):
            g.lg(f"ds_read_b64_tr_b16 {vr(44+4*e+2*hh,2)}, v{a} offset:{off+2560*hh}", f"t{e}")
    g(f"s_mul_i32 s{sTAG}, s{sE}, 0x9E3779B1\ns_add_u32 s{sTAG}, s{sTAG}, 0x85EBCA6B")
    for e in range(3):
        g.wait(lg=f"t{e}")
        g.vm(f"buffer_store_dwordx4 {vr(44+4*e,4)}, v{23 if e==2 else 22}, {srd(sWS)}, s51 offen offset:{1024*e} sc1", "ws")
    xload(1)
    g(f"v_lshlrev_b32 v30, 3, v31\nv_lshrrev_b32 v19, v30, s{sTAG}\nv_and_b32 v19, 0xff, v19")
    if B:
        g.wait(vm="M")
        for ks in range(7):
            for hh in range(2):
                g.lg(f"ds_read_b64_tr_b16 {vr(60+4*ks+2*hh,2)}, v25 offset:{1024*ks+128*hh}", f"m{ks}")
        for ks in range(7):
            g.wait(lg=f"m{ks}")
            g(f"v_mfma_f32_16x16x32_bf16 v[56:59], {vr(200+4*ks,4)}, {vr(60+4*ks,4)}, {'v[56:59]' if ks else 0}")
        g("s_mov_b32 s55, 0xffffff00\nv_and_or_b32 v56, v56, s55, v19")
    g.wait(vm="ws", lg="*")
    TS(2)

phase1(False)
g("s_branch L_p1j\nL_p1b:")
phase1(True)
g("L_p1j:\ns_barrier")
g.vm(f"buffer_store_dword v56, v24, {srd(sWS)}, s53 offen sc1", "pub")
g("s_cmp_ge_u32 s2, 224\ns_cbranch_scc1 L_svc1")

def ln(i):
    g.wait(vm=f"x{i}")
    T = 100 + i*20
    g("s_mov_b32 s55, 0x3f803f80\nv_mov_b32 v20, 0\nv_mov_b32 v21, 0")
    for d in range(20): g(f"v_dot2c_f32_bf16 v20, s55, v{T+d}\nv_dot2c_f32_bf16 v21, v{T+d}, v{T+d}")
    for r in (8, 4, 2, 1):
        g(f"v_add_f32_dpp v20, v20, v20 row_ror:{r} {DPP}\nv_add_f32_dpp v21, v21, v21 row_ror:{r} {DPP}")
        if r > 1: g(f"v_lshlrev_b32 v{24+ (8,4,2).index(r)*2}, 16, v{T+(8,4,2).index(r)}")
    g(f"""v_mul_f32 v20, 0x3acccccd, v20
v_mul_f32 v21, 0x3acccccd, v21
v_fma_f32 v21, -v20, v20, v21
v_max_f32 v21, 0, v21
v_add_f32 v21, 0x3727c5ac, v21
v_rsq_f32 v22, v21
v_and_b32 v25, 0xffff0000, v{T}
v_mul_f32 v23, -v20, v22""")
    for d in range(20):
        t = 24 + 2*(d % 4)
        if d >= 3: g(f"v_lshlrev_b32 v{t}, 16, v{T+d}")
        if d >= 1: g(f"v_and_b32 v{t+1}, 0xffff0000, v{T+d}")
        g(f"v_pk_fma_f32 v[{t}:{t+1}], v[{t}:{t+1}], v[22:23], v[22:23] op_sel:[0,0,1] op_sel_hi:[1,0,1]")
        if d >= 1: g(f"v_cvt_pk_f16_f32 v{T+d-1}, v{24+2*((d-1)%4)}, v{25+2*((d-1)%4)}")
    g(f"v_cvt_pk_f16_f32 v{T+19}, v30, v31")

def gather_loads(q):
    for st in range(2):
        for p in range(3):
            s = f"buffer_load_dwordx4 {vr(40+12*st+4*p,4)}, v{248+st}, {srd(sWS)}, s{56+p} offen sc1"
            if q: g.vm(s, "ga")
            else: g(s)
def gather_check():
    for st in range(2):
        for p in range(3):
            b = 40 + 12*st + 4*p
            g(f"v_perm_b32 v64, v{b+1}, v{b}, s{sPA}\nv_perm_b32 v65, v{b+3}, v{b+2}, s{sPB}\nv_bitop3_b32 v{66+p}, v64, v65, s{sTAG} bitop3:0x56")
        g(f"v_or3_b32 v{69+st}, v66, v67, v68")
    g("v_and_b32 v70, v70, v250\nv_or_b32 v69, v69, v70\nv_cmp_ne_u32 vcc, 0, v69")

xload(2)
g(f"""s_mul_i32 s55, s3, 80
v_add_u32 v30, s55, v1
v_add_u32 v31, 64, v30
v_cmp_gt_u32 vcc, 16, v1
v_lshrrev_b32 v32, 2, v30
v_and_b32 v33, 3, v30
v_lshlrev_b32 v33, 4, v33
v_lshl_add_u32 v248, v32, 7, v33
v_add_u32 v249, 2048, v248
v_cndmask_b32 v249, v26, v249, vcc
v_cndmask_b32 v250, 0, -1, vcc
v_lshlrev_b32 v251, 4, v30
v_add_u32 v251, {GS}, v251
v_cmp_le_u32 vcc, 160, v30
s_mov_b32 s56, {PUB1}
s_mov_b32 s57, {PUB1+80*128}
s_mov_b32 s58, {PUB1+160*128}
v_cndmask_b32 v252, 0, 1.0, vcc
v_mov_b32 v255, v26""")
g(f"""v_lshrrev_b32 v30, 1, v3
v_and_b32 v31, 1, v3
v_mul_u32_u24 v30, 7680, v30
s_lshl_b32 s55, s3, 9
v_lshlrev_b32 v32, 8, v31
v_lshl_add_u32 v32, v2, 4, v32
v_add3_u32 v5, v30, v32, s55
v_lshrrev_b32 v32, 2, v2
v_cmp_ne_u32 vcc, 1, v32
v_max_u32 v32, 1, v32
v_add_u32 v32, -1, v32
v_mul_u32_u24 v32, 2560, v32
v_lshl_add_u32 v32, v31, 6, v32
v_and_b32 v33, 3, v2
v_lshl_add_u32 v32, v33, 4, v32
s_lshl_b32 s55, s3, 7
s_add_u32 s55, s55, 2048
v_add3_u32 v6, v30, v32, s55
v_cndmask_b32 v6, v26, v6, vcc
v_lshrrev_b32 v30, 4, v0
v_and_b32 v31, 7, v2
v_xor_b32 v30, v30, v31
v_lshlrev_b32 v30, 4, v30
v_lshl_add_u32 v30, v33, 8, v30
v_lshrrev_b32 v32, 2, v2
v_mul_u32_u24 v32, 5120, v32
v_add_u32 v7, v30, v32
v_xor_b32 v30, v2, v3
v_lshlrev_b32 v30, 4, v30
v_lshl_add_u32 v8, v3, 8, v30
v_xor_b32 v9, 64, v8
v_lshlrev_b32 v10, 5, v2
v_add_u32 v10, {GS}, v10
s_mul_i32 s59, s{sHG}, 307200
s_add_u32 s59, s59, {WPP}
s_add_u32 s60, s59, 5120""")
ln(0); xload(3); ln(1); xload(4); gather_loads(True); ln(2); ln(3)
TS(3)
g.wait(vm="ga")
gather_check()
g("s_cbranch_vccnz L_ga_retry\nL_ga_ok:")
save = g.l; g.l = []
g("L_ga_retry:"); gather_loads(False); g("s_waitcnt vmcnt(0)"); gather_check(); spin("L_ga_retry", "L_ga_ok"); g("s_branch L_ga_ok")
ool.append(g.l); g.l = save
g("s_barrier")
TS(4)
wq = []
WF = " sc1" if P["wsc1"] else ""
for ks in range(20):
    b = 40 + (ks % 12)*16
    wq += [[('vm', f"buffer_load_dwordx4 {ar(b,4)}, v5, {srd(sWS)}, s59 offen{WF}", f"w{ks}")],
           [('vm', f"buffer_load_dwordx4 {ar(b+4,4)}, v5, {srd(sWS)}, s59 offen offset:2560{WF}", f"w{ks}")],
           [('vm', f"buffer_load_dwordx4 {ar(b+8,4)}, v5, {srd(sWS)}, s60 offen{WF}", f"w{ks}"), ('s', "s_add_u32 s60, s60, 15360")],
           [('vm', f"buffer_load_dwordx4 {ar(b+12,4)}, v6, {srd(sWS)}, s59 offen{WF}", f"w{ks}"), ('s', "s_add_u32 s59, s59, 15360")]]
for _ in range(4*P["lead"]):
    for it in wq.pop(0): g.item(it)
g("s_mov_b32 s55, 0xffffff00")
for st in range(2):
    b = 40 + 12*st
    for k in range(12): g(f"v_and_b32 v{b+k}, s55, v{b+k}")
    for p in (1, 2):
        for h in (0, 2): g(f"v_pk_add_f32 v[{b+h}:{b+h+1}], v[{b+h}:{b+h+1}], v[{b+4*p+h}:{b+4*p+h+1}]")
    for rep in range(2):
        g(f"v_cvt_pk_bf16_f32 v{b+4}, v{b}, v{b+1}\nv_cvt_pk_bf16_f32 v{b+5}, v{b+2}, v{b+3}")
        g(f"v_lshlrev_b32 v{b}, 16, v{b+4}\nv_and_b32 v{b+1}, 0xffff0000, v{b+4}\nv_lshlrev_b32 v{b+2}, 16, v{b+5}\nv_and_b32 v{b+3}, 0xffff0000, v{b+5}")
        if rep == 0:
            for h in (0, 2): g(f"v_pk_add_f32 v[{b+h}:{b+h+1}], v[{b+h}:{b+h+1}], v[252:253] op_sel_hi:[1,0]")
    if st == 0: g.lg(f"ds_write_b128 v251, {vr(b,4)}", "gsw")
    else:
        g("s_mov_b64 exec, 0xffff"); g.lg(f"ds_write_b128 v251, {vr(b,4)} offset:1024", "gsw"); g("s_mov_b64 exec, -1")
ln(4)
g.wait(lg="*"); g("s_barrier")
def gs_reads(c):
    return [('lg', f"ds_read_b128 {vr(200+4*k,4)}, v10 offset:{c*512 + (2560 if k < 2 else 0) + 16*(k&1)}", "gs") for k in range(4)]
def modul(c):
    out = []
    for i in range(5):
        T = 100 + (i*5+c)*4; o = 220 + 4*(i & 1)
        for d in range(4):
            f = 216 + 2*(d & 1)
            out += [f"v_fma_mix_f32 v{f}, v{T+d}, v{200+2*d}, v{208+2*d} op_sel:[0,0,0] op_sel_hi:[1,0,0]",
                    f"v_fma_mix_f32 v{f+1}, v{T+d}, v{201+2*d}, v{209+2*d} op_sel:[1,0,0] op_sel_hi:[1,0,0]",
                    f"v_cvt_pk_bf16_f32 v{o+d}, v{f}, v{f+1}"]
        out.append(('lg', f"ds_write_b128 v7, {vr(o,4)} offset:{(c%3)*20480+i*1024}", "hw"))
    return out
def a_reads(ks):
    return [('lg', f"ds_read_b128 {ar((ks&1)*20+4*i,4)}, v{8+(ks&1)} offset:{(ks%12)*5120+i*1024}", f"a{ks}") for i in range(5)]
for it in gs_reads(0): g.item(it)
g.wait(lg="gs")
for it in modul(0): g.item(it)
for it in gs_reads(1): g.item(it)
g.wait(lg="hw"); g("s_barrier")
for it in a_reads(0): g.item(it)
TS(5)

acc = lambda t, i: 20 + (i*4+t)*4
AK, BQ, VV, VT, CC, CP, MP, SEL, ONE = 100, 120, 140, 152, 164, 168, 172, 174, 176
NEG = f2u(-1e30)
def attn_consts():
    o = [f"v_mov_b32 v180, {NEG}", "v_lshlrev_b32 v181, 2, v3", "v_sub_u32 v181, v2, v181"]
    for r in range(4):
        o += [f"v_subrev_u32 v182, {r}, v181", f"v_cmp_gt_u32 vcc, 8, v182", f"v_cmp_gt_i32 s[62:63], -8, v182", f"v_mov_b32 v{ONE+r}, 0x3f803f80",
              f"v_cndmask_b32 v{CC+r}, v180, 0, vcc", f"v_cndmask_b32 v{CP+r}, v180, 0, s[62:63]", f"v_cndmask_b32 v{184+r}, 0, -1, s[62:63]"]
    o += ["v_mov_b32 v182, 0xffff", f"v_bfi_b32 v{MP}, v182, v184, v185", f"v_bfi_b32 v{MP+1}, v182, v186, v187"]
    o += ["v_and_b32 v181, 1, v1", "v_lshlrev_b32 v181, 4, v181", "v_mov_b32 v182, 0x3f80", "v_lshlrev_b32 v182, v181, v182",
          "v_and_b32 v181, 0x32, v1", "v_cmp_eq_u32 vcc, 0x30, v181", "v_cmp_eq_u32 s[62:63], 50, v181", f"v_mov_b32 v{VV}, 0",
          f"v_cndmask_b32 v{SEL}, 0, v182, vcc", f"v_cndmask_b32 v{SEL+1}, 0, v182, s[62:63]",
          f"v_mov_b32 v{VV+1}, 0", f"v_mov_b32 v{VT}, 0", f"v_mov_b32 v{VT+1}, 0"]
    for i in range(5): o += [f"v_mov_b32 v{BQ+4*i+2}, 0", f"v_mov_b32 v{BQ+4*i+3}, 0"]
    o += ["v_mul_u32_u24 v247, 176, v2", "v_add_u32 v247, s61, v247", "v_lshl_add_u32 v246, v3, 3, v247"]
    return o
def st3_addr():
    o = []
    for n in range(3):
        o += [f"v_add_u32 v228, {64*n}, v1", "v_mul_u32_u24 v229, 5462, v228", "v_lshrrev_b32 v229, 16, v229", "v_mul_u32_u24 v230, 12, v229",
              "v_sub_u32 v228, v228, v230", "v_cmp_gt_u32 vcc, s100, v228", "v_mul_u32_u24 v230, 2560, v229", f"v_lshl_add_u32 v230, v228, 4, v230",
              f"v_cndmask_b32 v{235+n}, v255, v230, vcc", "v_lshrrev_b32 v230, 3, v229", "v_lshlrev_b32 v230, 1, v230", "v_xor_b32 v228, v228, v230",
              "v_mul_u32_u24 v230, 1280, v229", "v_lshl_add_u32 v230, v228, 4, v230", f"v_cndmask_b32 v{232+n}, v255, v230, vcc"]
    o += ["v_cmp_gt_u32 vcc, s101, v1", "v_lshlrev_b32 v228, 4, v1", "v_lshlrev_b32 v229, 3, v1", "v_cndmask_b32 v238, v255, v228, vcc", "v_cndmask_b32 v239, v255, v229, vcc", "v_cndmask_b32 v250, 0, -1, vcc"]
    return o
assert all((u*5462 >> 16) == u//12 for u in range(192))
g(f"""s_cmp_eq_u32 s{sCG}, 6
s_cselect_b32 s100, 8, 12
s_cselect_b32 s101, 16, 24
s_mul_i32 s52, s{sCG}, 192
s_mul_i32 s48, s3, 20480
s_add_u32 s48, s48, s52
s_mul_i32 s49, s3, 3072
s_lshl_b32 s53, s{sRB3}, 2
s_add_u32 s53, s53, s3
s_and_b32 s50, s53, 63
s_lshl_b32 s50, s50, 5
s_lshr_b32 s54, s53, 6
s_add_u32 s54, s50, s54
s_mul_i32 s50, s54, 1280
s_add_u32 s50, s50, s52
s_mul_i32 s51, s3, 2560
s_lshl_b32 s55, s52, 1
s_add_u32 s51, s51, s55
s_add_u32 s51, s51, {MOD2}
s_mul_i32 s61, s3, 40
s_add_u32 s61, s61, {OST}""")
def wo_dma(nlist):
    out = []
    for n in nlist:
        for k in range(3):
            out.append([('s', f"s_add_u32 m0, s49, {n*12288+k*1024}"), ('s', f"s_add_u32 s55, s48, {n*81920}"),
                        ('vm', f"buffer_load_dwordx4 v{232+k}, {srd(sWO)}, s55 offen lds", "wo")])
    return out
extra = [[('vm', f"buffer_load_dwordx4 v[240:243], v238, {srd(sWS)}, s51 offen sc1", "mv")],
         [('vm', f"buffer_load_dwordx2 v[244:245], v239, {srd(sWR)}, s52 offen", "mv")]]
for k in range(3):
    extra.append([('s', f"s_add_u32 m0, s49, {XR+k*1024}"), ('vm', f"buffer_load_dwordx4 v{235+k}, {srd(sX)}, s50 offen lds", "xr")])
dq1 = wo_dma([0, 1, 2, 3, 4, 5, 9]); dq2 = wo_dma([6, 7, 8]) + extra
carry = []
for ks in range(20):
    c = ks >> 2; ph = ks & 3
    wb = 40 + (ks % 12)*16; ab = (ks & 1)*20
    mf = []
    for i in range(5):
        for t in range(4):
            A, B = (ar(ab+4*i, 4), ar(wb+4*t, 4)) if t == 2 else (ar(wb+4*t, 4), ar(ab+4*i, 4))
            d = vr(acc(t, i), 4)
            mf.append(f"v_mfma_f32_16x16x32_bf16 {d}, {A}, {B}, {d if ks else 0}")
    pre = {0: [('wait', f"w{ks}", f"a{ks}" if ph != 3 else "*")]}
    if ph == 3: pre[0].append(('s', "s_barrier"))
    mem = {}
    if ks == 11: pre[0] += ["v_add_u32 v8, 61440, v8"]
    if ks == 12: pre[0] += ["v_add_u32 v9, 61440, v9"]
    if ks < 19:
        for j, it in enumerate(a_reads(ks+1)): mem[2*j] = [it]
    if ph == 3 and c + 2 < 5:
        for j, it in enumerate(gs_reads(c+2)): mem[10+2*j] = [it]
    slots = [1, 5, 9, 13, 17, 3, 11, 19, 7, 15]
    nl = P["lpk"]
    k = 0
    used = []
    while k < nl and wq:
        nxt = int(wq[0][0][2][1:])
        if nxt - ks >= 12: break
        used.append(wq.pop(0)); k += 1
    if not wq and ks >= 15:
        q = dq1 if dq1 else (dq2 if ks == 19 else [])
        while k < 4 and q:
            used.append(q.pop(0)); k += 1
    for j, its in zip(sorted(slots[:len(used)]), used):
        first = [x for x in its if x[0] == 's' and its.index(x) < [y[0] for y in its].index('vm')]
        rest = [x for x in its if x not in first]
        mem[j] = rest
        mem[j-1] = mem.get(j-1, []) + first
    va = list(carry)
    if ph == 0 and c < 4:
        if c == 2: va.append((0, "v_add_u32 v7, 61440, v7"))
        pre[0].insert(0, ('wait', None, "gs"))
        va += [(0, it) for it in modul(c+1)]
    if ks == 3: va += [(0, it) for it in st3_addr()[:15]]
    if ks == 7: va += [(0, it) for it in st3_addr()[15:30]]
    if ks == 11: va += [(0, it) for it in st3_addr()[30:]]
    if ks == 16: va += [(0, it) for it in attn_consts()]
    carry = gaps(g, mf, mem, va, pre)
    if ph == 2 or ph == 3: assert not carry, (ks, len(carry))
TS(6)
dq = dq1 + dq2
att = []
R5 = range(5)
cvt = lambda d, s: [f"v_cvt_pk_bf16_f32 v{d}, v{s}, v{s+1}", f"v_cvt_pk_bf16_f32 v{d+1}, v{s+2}, v{s+3}"]
for i in R5: att += cvt(AK+4*i+2, acc(3, i)) + cvt(AK+4*i, acc(1, i)) + cvt(BQ+4*i, acc(0, i))
for i in R5:
    att += [f"v_permlane32_swap_b32 v{BQ+4*i+2}, v{AK+4*i+2}", f"v_permlane32_swap_b32 v{BQ+4*i+3}, v{AK+4*i+3}"] + cvt(VV+2+2*i, acc(2, i))
for i in R5:
    att.append(f"v_mfma_f32_16x16x32_bf16 {vr(acc(1,i),4)}, {vr(AK+4*i,4)}, {vr(BQ+4*i,4)}, {vr(CC,4)}")
    if i: att.append(f"v_mfma_f32_16x16x32_bf16 {vr(acc(0,i),4)}, {vr(AK+4*i-4,4)}, {vr(BQ+4*i,4)}, {vr(CP,4)}")
for i in R5: att.append(f"v_mfma_f32_16x16x16_bf16 {vr(acc(3,i),4)}, {vr(AK+4*i+2,2)}, {vr(SEL,2)}, 0")
MX = 180
SC = f2u(20**-0.5*math.log2(math.e))
att.append(f"s_mov_b32 s62, {SC}")
for i in R5:
    s = acc(1, i)
    if i: att += [f"v_max_f32 v{s+r}, v{s+r}, v{acc(0,i)+r}" for r in range(4)]
    att += [f"v_max3_f32 v{MX+2*i}, v{s}, v{s+1}, v{s+2}", f"v_max_f32 v{MX+2*i}, v{MX+2*i}, v{s+3}", f"v_mov_b32 v{MX+2*i+1}, v{MX+2*i}"]
for i in R5: att.append(f"v_permlane32_swap_b32 v{MX+2*i}, v{MX+2*i+1}")
for i in R5: att += [f"v_max_f32 v{MX+2*i}, v{MX+2*i}, v{MX+2*i+1}", f"v_mov_b32 v{MX+2*i+1}, v{MX+2*i}"]
for i in R5: att.append(f"v_permlane16_swap_b32 v{MX+2*i}, v{MX+2*i+1}")
for i in R5: att += [f"v_max_f32 v{MX+2*i}, v{MX+2*i}, v{MX+2*i+1}", f"v_mul_f32 v{MX+2*i+1}, s62, v{MX+2*i}", f"v_mov_b32 v{MX+2*i}, s62"]
for i in R5: att += cvt(VT+2+2*i, acc(3, i))
for i in R5:
    s = acc(1, i); p = acc(2, i)
    att += [f"v_pk_fma_f32 v[{s+h}:{s+h+1}], v[{s+h}:{s+h+1}], v[{MX+2*i}:{MX+2*i+1}], v[{MX+2*i}:{MX+2*i+1}] op_sel:[0,0,1] op_sel_hi:[1,0,1] neg_lo:[0,0,1] neg_hi:[0,0,1]" for h in (0, 2)]
for i in R5:
    s = acc(1, i); p = acc(2, i)
    att += [f"v_exp_f32 v{s+r}, v{s+r}" for r in range(4)]
for i in R5:
    s = acc(1, i); p = acc(2, i)
    att += cvt(p+2, s) + [f"v_and_b32 v{p}, v{MP}, v{p+2}", f"v_and_b32 v{p+1}, v{MP+1}, v{p+3}", f"v_xor_b32 v{p+2}, v{p}, v{p+2}", f"v_xor_b32 v{p+3}, v{p+1}, v{p+3}"]
for i in R5: att.append(f"v_mfma_f32_16x16x32_bf16 {vr(acc(3,i),4)}, {vr(ONE,4)}, {vr(acc(2,i),4)}, 0")
for i in R5:
    att += [f"v_mfma_f32_16x16x32_bf16 {vr(acc(0,i),4)}, {vr(VV+2*i,4)}, {vr(acc(2,i),4)}, 0",
            f"v_mfma_f32_16x16x32_bf16 {vr(acc(1,i),4)}, {vr(VT+2*i,4)}, {vr(acc(2,i),4)}, 0", f"v_rcp_f32 v{acc(3,i)}, v{acc(3,i)}"]
for i in R5:
    for t in (0, 1):
        s = acc(t, i)
        att += [f"v_pk_mul_f32 v[{s+h}:{s+h+1}], v[{s+h}:{s+h+1}], {vr(acc(3,i),2)} op_sel_hi:[1,0]" for h in (0, 2)]
        att += cvt(s, s)
        att.append(('lg', f"ds_write_b64 v{247 if t else 246}, {vr(s,2)} offset:{i*16*176 + (32 if t else 0)}", "ow"))
step = max(1, (len(att) - 30)//(len(dq) + 1))
for n, it in enumerate(att):
    g.item(it)
    if n % step == step - 1 and dq:
        for x in dq.pop(0): g.item(x)
assert not dq
for n in range(4): g(f"v_add_u32 v{15+n}, {OST}, v{15+n}")
g.wait(lg="*"); g("s_barrier")
for n in range(4): g.lg(f"ds_read_b128 {vr(20+4*n,4)}, v{15+n}", f"or{n}")
for n in range(4):
    g.wait(lg=f"or{n}")
    g.vm(f"buffer_store_dwordx4 {vr(20+4*n,4)}, v{11+n}, {srd(sWS)}, s{sOB} offen sc1", "os")
TS(7)
def mv_check():
    g(f"v_perm_b32 v228, v241, v240, s55\nv_perm_b32 v229, v243, v242, s55\nv_xor_b32 v228, s{sTAG}, v228\nv_xor_b32 v229, s{sTAG}, v229\nv_or_b32 v228, v228, v229\nv_and_b32 v228, v228, v250\nv_cmp_ne_u32 vcc, 0, v228")
g("s_mov_b32 s55, 0x05040100")
g.wait(vm=["wo", "mv", "xr"])
mv_check()
g("s_cbranch_vccnz L_mv_retry\nL_mv_ok:")
save = g.l; g.l = []
g(f"L_mv_retry:\nbuffer_load_dwordx4 v[240:243], v238, {srd(sWS)}, s51 offen sc1\ns_waitcnt vmcnt(0)"); mv_check(); spin("L_mv_retry", "L_mv_ok"); g("s_branch L_mv_ok")
ool.append(g.l); g.l = save
for k in range(4): g(f"v_and_b32 v{240+k}, 0xffff0000, v{240+k}")
g(f"""v_lshlrev_b32 v40, 16, v244
v_and_b32 v41, 0xffff0000, v244
v_lshlrev_b32 v42, 16, v245
v_and_b32 v43, 0xffff0000, v245
s_mul_i32 s55, s3, 384
s_add_u32 s55, s55, {MV}
v_lshl_add_u32 v228, v1, 4, s55
v_pk_mul_f32 v[40:41], v[40:41], v[240:241]
v_pk_mul_f32 v[42:43], v[42:43], v[242:243]
s_mov_b64 exec, 0xffffff""")
g.lg("ds_write_b128 v228, v[240:243]", "mw"); g.lg("ds_write_b128 v228, v[40:43] offset:1536", "mw")
g(f"""s_mov_b64 exec, -1
v_bfe_u32 v228, v1, 2, 2
v_lshl_add_u32 v228, v3, 3, v228
v_mul_u32_u24 v228, 192, v228
v_and_b32 v229, 3, v1
v_lshl_add_u32 v228, v229, 3, v228
v_and_b32 v229, 1, v3
v_lshl_add_u32 v4, v229, 5, v228
v_xor_b32 v229, 1, v229
v_lshl_add_u32 v5, v229, 5, v228
v_add_u32 v6, 61440, v4
v_add_u32 v7, 61440, v5
v_lshlrev_b32 v8, 4, v1
v_lshlrev_b32 v9, 4, v3
v_add_u32 v9, {MV}, v9
v_mul_u32_u24 v10, 192, v2
v_lshl_add_u32 v10, v3, 3, v10
s_add_u32 s55, s49, {XR}
v_add_u32 v10, s55, v10
v_add_u32 v11, s55, v8
v_lshlrev_b32 v12, 2, v1
s_mul_i32 s56, s53, 20480
s_add_u32 s56, s56, {OPP}
s_add_u32 s57, s56, 4096
s_add_u32 s58, s56, 8192
s_add_u32 s59, s56, 12288
s_add_u32 s60, s56, 16384""")
g.wait(lg="*"); g("s_barrier")
TS(8)
def btr(dst, ks, j, tag):
    base = 4 + (j & 1) + (2 if ks >= 10 else 0)
    return [('lg', f"ds_read_b64_tr_b16 {dst(2*hh)}, v{base} offset:{(ks%10)*6144 + hh*768 + (j & ~1)*32}", tag) for hh in range(2)]
oload = lambda ks: f"buffer_load_dwordx4 {vr(100+4*ks,4)}, v8, {srd(sWS)}, s{56+ks//4} offen offset:{(ks%4)*1024} sc1"
pl = []
for j in range(6): pl.append(('lg', f"ds_read_b64 {vr(92+2*(j%3),2) if False else vr(20+2*j,2)}, v10 offset:{32*j}", "xr"))
for j in range(6): pl.append(('lg', f"ds_read_b128 {vr(204+4*j,4)}, v9 offset:{6*384+64*j}", "cc"))
for j in range(6): pl.append(('lg', f"ds_read_b128 {vr(180+4*j,4)}, v9 offset:{64*j}", "cc"))
for ks in range(20):
    for j in range(3): pl += btr(lambda o: ar((ks*3+j)*4+o, 2), ks, j, "bp")
for j in range(3): pl += btr(lambda o: vr(44+4*j+o, 2), 0, 3+j, "b0")
for n, it in enumerate(pl):
    if n == P["odelay"]:
        for ks in range(20): g.vm(oload(ks), f"o{ks//5}")
    if n == 34:
        g.wait(lg="cc")
        for k in range(12): g(f"v_lshlrev_b32 v{68+2*k}, 16, v{20+k}\nv_and_b32 v{69+2*k}, 0xffff0000, v{20+k}")
        g("v_pk_add_f32 v[94:95], v[204:205], v[206:207]")
        for k in range(2, 12): g(f"v_pk_add_f32 v[94:95], v[94:95], v[{204+2*k}:{205+2*k}]")
        g("v_add_f32 v95, v94, v95")
    g.item(it)
def ocheck(n):
    b = 100 + 20*n
    g(f"v_max3_u32 v92, v{b}, v{b+1}, v{b+2}\nv_max3_u32 v93, v{b+3}, v{b+4}, v{b+5}")
    for k in range(7): g(f"v_max3_u32 v{92+(k&1)}, v{92+(k&1)}, v{b+6+2*k}, v{b+7+2*k}")
    g("v_max_u32 v92, v92, v93\nv_cmp_eq_u32 vcc, -1, v92")
for ks in range(20):
    if ks % 5 == 0:
        n = ks//5
        g.wait(vm=f"o{n}")
        ocheck(n)
        if n == 0: TS(9)
        g(f"s_cbranch_vccnz L_o{n}_retry\nL_o{n}_ok:")
        save = g.l; g.l = []
        g(f"L_o{n}_retry:")
        for k in range(ks, ks+5): g(oload(k))
        g("s_waitcnt vmcnt(0)"); ocheck(n); spin(f"L_o{n}_retry", f"L_o{n}_ok"); g(f"s_branch L_o{n}_ok")
        ool.append(g.l); g.l = save
    sb = 44 + 12*(ks & 1); nb = 44 + 12*((ks+1) & 1)
    mf = []
    for j in range(6):
        A = ar((ks*3+j)*4, 4) if j < 3 else vr(sb+4*(j-3), 4)
        d = vr(20+4*j, 4)
        mf.append(f"v_mfma_f32_16x16x32_bf16 {d}, {A}, {vr(100+4*ks,4)}, {d if ks else 0}")
    mem = {}; pre = {}
    if ks == 0: pre[0] = [('wait', None, "bp")]
    if ks < 19:
        its = []
        for j in range(3): its += btr(lambda o: vr(nb+4*j+o, 2), ks+1, 3+j, f"b{ks+1}")
        for k, it in enumerate(its): mem[k] = [it]
    pre[3] = [('wait', None, f"b{ks}")]
    gaps(g, mf, mem, [], pre)
TS(10)
for v, b in ((2, 100), (1, 124), (3, 148)):
    for j in range(6): g.lg(f"ds_read_b128 {vr(b+4*j,4)}, v9 offset:{v*384+64*j}", "m2")
pk = lambda b, k: f"v[{b+2*k}:{b+2*k+1}]"
for k in range(12): g(f"v_pk_fma_f32 {pk(20,k)}, {pk(20,k)}, {pk(180,k)}, {pk(68,k)}")
g(f"v_pk_mul_f32 v[46:47], {pk(20,0)}, {pk(20,0)}\nv_pk_mul_f32 v[48:49], {pk(20,0)}, {pk(204,0)}\nv_pk_add_f32 v[44:45], {pk(20,0)}, {pk(20,1)}")
for k in range(1, 12):
    g(f"v_pk_fma_f32 v[46:47], {pk(20,k)}, {pk(20,k)}, v[46:47]\nv_pk_fma_f32 v[48:49], {pk(20,k)}, {pk(204,k)}, v[48:49]")
    if k > 1: g(f"v_pk_add_f32 v[44:45], v[44:45], {pk(20,k)}")
g(f"""v_add_f32 v44, v44, v45
v_add_f32 v46, v46, v47
v_add_f32 v48, v48, v49
s_lshl_b32 s56, s53, 11
s_add_u32 s56, s56, {STATS}
s_lshl_b32 s57, s{sCG}, 8
s_add_u32 s57, s57, s56
v_permlane32_swap_b32 v44, v46
v_permlane32_swap_b32 v48, v95
v_add_f32 v44, v44, v46
v_add_f32 v48, v48, v95
s_mov_b32 s55, 0xffffff00
v_permlane16_swap_b32 v44, v48
v_add_f32 v44, v44, v48
v_and_or_b32 v44, v44, s55, v19""")
g.vm(f"buffer_store_dword v44, v12, {srd(sWS)}, s57 offen sc1", "st")
TS(11)
for _ in range(P["adelay"]): g("s_sleep 1")
g("L_st_poll:")
for k in range(7): g(f"buffer_load_dword v{44+k}, v12, {srd(sWS)}, s56 offen offset:{256*k} sc1")
g("s_waitcnt vmcnt(0)"); g.vmq[:] = []
g("v_xor_b32 v52, v44, v19")
for k in range(1, 7): g(f"v_bitop3_b32 v52, v52, v{44+k}, v19 bitop3:0xf6")
g("v_and_b32 v52, 0xff, v52\nv_cmp_ne_u32 vcc, 0, v52")
spin("L_st_poll", "L_st_ok")
g("L_st_ok:")
TS(12)
for k in range(7): g(f"v_and_b32 v{44+k}, s55, v{44+k}")
g(f"""v_add_f32 v44, v44, v45
v_add_f32 v46, v46, v47
v_add_f32 v48, v48, v49
v_add_f32 v44, v44, v50
v_add_f32 v46, v46, v48
v_add_f32 v44, v44, v46
v_mov_b32 v46, v44
v_permlane32_swap_b32 v44, v46
v_mov_b32 v45, v44
v_mov_b32 v47, v46
v_permlane16_swap_b32 v44, v45
v_permlane16_swap_b32 v46, v47
v_mul_f32 v44, 0x3acccccd, v44
v_mul_f32 v46, 0x3acccccd, v46
v_fma_f32 v46, -v44, v44, v46
v_max_f32 v46, 0, v46
v_add_f32 v46, 0x3727c5ac, v46
v_rsq_f32 v48, v46
v_fma_f32 v45, -v44, v47, v45
v_mul_f32 v45, v45, v48
v_mul_f32 v49, -v44, v48
s_lshl_b32 s57, s3, 2
s_add_u32 s57, s57, {AM}
v_max_f32_dpp v46, v45, v45 row_ror:8 {DPP}
v_mov_b32 v50, s57
v_and_b32 v51, 12, v12
v_max_f32_dpp v46, v46, v46 row_ror:4 {DPP}
v_add_u32 v51, {AM}, v51
v_max_f32_dpp v46, v46, v46 row_ror:2 {DPP}
v_max_f32_dpp v46, v46, v46 row_ror:1 {DPP}""")
g.lg("ds_write_b32 v50, v46", "am")
for k in range(12): g(f"v_pk_fma_f32 {pk(68,k)}, {pk(20,k)}, v[48:49], v[48:49] op_sel:[0,0,1] op_sel_hi:[1,0,1]")
g.wait(lg="*"); g("s_barrier")
g.lg("ds_read_b32 v52, v51", "am")
for k in range(12): g(f"v_pk_fma_f32 {pk(68,k)}, {pk(68,k)}, {pk(100,k)}, {pk(124,k)}")
g.wait(lg="*")
g(f"""v_max_f32_dpp v53, v52, v52 quad_perm:[1,0,3,2] {DPP}
v_max_f32_dpp v53, v53, v53 quad_perm:[2,3,0,1] {DPP}
v_cmp_eq_f32 vcc, v53, v52
v_cmp_eq_f32 s[58:59], v53, v45
s_ff1_i32_b64 s57, vcc
s_and_b32 s57, s57, 3
s_cmp_eq_u32 s57, s3
s_cbranch_scc0 L_nowin
s_ff1_i32_b64 s57, s[58:59]
s_and_b32 s57, s57, 15
s_cmp_eq_u32 s{sCG}, 0
s_cbranch_scc0 L_nocand
s_lshl_b32 s58, s57, 1
s_add_u32 s58, s58, s54
v_mov_b32 v56, v53
v_mov_b32 v57, s58
v_mov_b32 v58, s{sTAG}
v_mov_b32 v59, s53
s_lshl_b32 s58, s{sRB3}, 7
s_add_u32 s58, s58, {CAND}
s_mov_b64 exec, 0xff
buffer_store_dwordx4 v[56:59], v8, {srd(sWS)}, s58 offen sc1
L_nocand:
s_mov_b32 s58, 0x00010001
s_lshl_b32 exec_lo, s58, s57
s_lshl_b32 exec_hi, s58, s57
s_lshl_b32 s58, s{sRB3}, 11
s_lshl_b32 s59, s{sCG}, 8
s_add_u32 s58, s58, s59
s_lshl_b32 s59, s58, 1
s_add_u32 s58, s58, {CROW}
s_add_u32 s59, s59, {CBASE}
v_lshlrev_b32 v54, 3, v3
v_lshlrev_b32 v55, 4, v3""")
for j in range(6):
    g(f"v_cvt_pk_bf16_f32 v{172+2*(j%4)}, v{68+4*j}, v{69+4*j}\nv_cvt_pk_bf16_f32 v{173+2*(j%4)}, v{70+4*j}, v{71+4*j}")
    g(f"buffer_store_dwordx2 {vr(172+2*(j%4),2)}, v54, {srd(sWS)}, s58 offen offset:{32*j} sc1")
g(f"s_and_b32 s60, s{sTAG}, 0xff\ns_bfe_u32 s61, s{sTAG}, 0x80008\ns_bfe_u32 s62, s{sTAG}, 0x80010\ns_lshr_b32 s63, s{sTAG}, 24\nv_mov_b32 v60, s55")
for j in range(6):
    for h in range(2): g(f"v_pk_fma_f32 {pk(100,2*j+h)}, {pk(68,2*j+h)}, {pk(148,2*j+h)}, {pk(20,2*j+h)}")
    for r in range(4): g(f"v_and_or_b32 v{100+4*j+r}, v{100+4*j+r}, v60, s{60+r}")
    g(f"buffer_store_dwordx4 {vr(100+4*j,4)}, v55, {srd(sWS)}, s59 offen offset:{64*j} sc1")
g("s_mov_b64 exec, -1\nL_nowin:")
TS(13)
for j in range(6):
    for h in range(2): g(f"v_pk_fma_f32 {pk(20,2*j+h)}, {pk(68,2*j+h)}, {pk(148,2*j+h)}, {pk(20,2*j+h)}")
    g(f"v_cvt_pk_bf16_f32 v{20+4*j}, v{20+4*j}, v{21+4*j}\nv_cvt_pk_bf16_f32 v{21+4*j}, v{22+4*j}, v{23+4*j}")
    g.lg(f"ds_write_b64 v10, {vr(20+4*j,2)} offset:{32*j}", "ow")
g.wait(lg="*")
for k in range(3): g.lg(f"ds_read_b128 {vr(44+4*k,4)}, v11 offset:{1024*k}", f"r{k}")
for k in range(3):
    g.wait(lg=f"r{k}")
    g(f"buffer_store_dwordx4 {vr(44+4*k,4)}, v{235+k}, {srd(sOUT)}, s50 offen sc1")
g(f"""s_lshl_b32 s56, s53, 3
s_add_u32 s56, s56, s{sCG}
s_lshl_b32 s56, s56, 4
s_add_u32 s56, s56, {OUTD}
v_mov_b32 v20, s{sTAG}
s_mov_b64 exec, 1
s_waitcnt vmcnt(0)
buffer_store_dword v20, v12, {srd(sWS)}, s56 offen sc1
s_mov_b64 exec, -1""")
TS(14)
g("s_branch L_fin")
for b in ool: g.l += b
ool[:] = []

sWG, sWU, sWD = sX, sWQ, sPZ
g(f"""L_svc0:
buffer_load_dword v42, v29, {srd(sWS)}, 0 offen sc1
s_waitcnt vmcnt(0)
v_readfirstlane_b32 s{sE}, v42
v_and_b32 v31, 3, v1
s_mul_i32 s{sTAG}, s{sE}, 0x9E3779B1
s_add_u32 s{sTAG}, s{sTAG}, 0x85EBCA6B
v_lshlrev_b32 v30, 3, v31
v_lshrrev_b32 v19, v30, s{sTAG}
v_and_b32 v19, 0xff, v19
L_svc1:
s_load_dwordx2 s[{sWG}:{sWG+1}], s[0:1], 40
s_load_dwordx2 s[{sWU}:{sWU+1}], s[0:1], 48
s_load_dwordx2 s[{sWD}:{sWD+1}], s[0:1], 56
v_lshlrev_b32 v28, 3, v0
buffer_load_dwordx2 v[40:41], v28, {srd(sC)}, 0 offen
s_sub_u32 s44, s2, 224
v_lshrrev_b32 v30, 3, v1
v_and_b32 v31, 7, v1
v_lshlrev_b32 v31, 4, v31
v_mad_u32_u24 v4, v30, 60, 0
v_lshl_add_u32 v4, v4, 7, v31
v_mad_u32_u24 v5, v30, 27, 0
v_lshl_add_u32 v5, v5, 7, v31
v_lshlrev_b32 v8, 4, v1
v_lshlrev_b32 v12, 2, v1
v_bfe_u32 v30, v1, 2, 2
v_lshl_add_u32 v30, v3, 3, v30
v_and_b32 v31, 3, v1
v_lshlrev_b32 v31, 3, v31
s_lshl_b32 s55, s3, 5
v_lshlrev_b32 v32, 7, v30
v_add3_u32 v6, v32, v31, s55
v_add_u32 v7, 40960, v6
v_add_u32 v9, 81920, v6
v_add_u32 v10, 81920+40960, v6
s_mul_i32 s55, s3, 320
s_add_u32 s55, s55, 81920
v_mul_u32_u24 v32, 1280, v30
v_add3_u32 v11, v32, v31, s55
v_and_b32 v30, 1, v1
v_lshlrev_b32 v30, 4, v30
v_lshrrev_b32 v13, v30, s{sTAG}
v_and_b32 v13, 0xffff, v13
v_mov_b32 v255, {OOB}
s_lshl_b32 s49, s3, 10
s_waitcnt vmcnt(0) lgkmcnt(0)
s_mov_b32 s{sWG+2}, 2211840
s_mov_b32 s{sWU+2}, 2211840
s_mov_b32 s{sWD+2}, 2211840""")
g.vmq[:] = []; g.lgq[:] = []
g("v_lshlrev_b32 v44, 16, v40\nv_and_b32 v45, 0xffff0000, v40\nv_lshlrev_b32 v46, 16, v41\nv_and_b32 v47, 0xffff0000, v41")
for k in range(4): silu(44+k, 48)
g(f"v_cvt_pk_bf16_f32 v40, v44, v45\nv_cvt_pk_bf16_f32 v41, v46, v47\nv_add_u32 v28, 100000-160, v28\nds_write_b64 v28, v[40:41]\nv_lshlrev_b32 v28, 4, v3\nv_add_u32 v28, 100000-160, v28\ns_waitcnt lgkmcnt(0)\ns_barrier")
for ks in range(20): g(f"ds_read_b128 {vr(100+4*ks,4)}, v28 offset:{64*ks}")
g("s_waitcnt lgkmcnt(0)\ns_barrier")
def tile_dma(half, sr, voff, s_src, step, tag, flags="nt"):
    g(f"s_add_u32 m0, s49, {half*81920}")
    for n in range(20):
        g.vm(f"buffer_load_dwordx4 v{voff}, {srd(sr)}, s{s_src} offen {flags} lds", tag)
        if n < 19: g(f"s_add_u32 m0, m0, 4096\ns_add_u32 s{s_src}, s{s_src}, {4*step}")
def tile_tr(half, dst):
    for ks in range(20):
        for hh in range(2):
            g(f"ds_read_b64_tr_b16 {dst(4*ks+2*hh)}, v{(6,9)[half] + (ks >= 10)} offset:{(ks%10)*4096+hh*512}")
def mod_src(sunit):
    g(f"s_lshl_b32 s50, s{sunit}, 7\ns_mul_i32 s55, s3, {8*7680}\ns_add_u32 s50, s50, s55\ns_add_u32 s50, s50, 2560")
def mod_consume(half, sunit):
    tile_tr(half, lambda o: vr(20+o, 2))
    g("s_waitcnt lgkmcnt(0)\ns_barrier")
    for ks in range(20): g(f"v_mfma_f32_16x16x32_bf16 v[180:183], {vr(100+4*ks,4)}, {vr(20+4*ks,4)}, {'v[180:183]' if ks else 0}")
    g(f"""s_sub_u32 s55, s{sunit}, 20
s_cmp_lt_u32 s55, 10
s_cselect_b32 s55, 1.0, 0
s_lshl_b32 s56, s{sunit}, 8
s_lshl_b32 s57, s3, 6
s_add_u32 s56, s56, s57
s_add_u32 s56, s56, {MOD2}
v_cvt_pk_bf16_f32 v180, v180, v180
v_lshlrev_b32 v180, 16, v180
v_add_f32 v180, s55, v180
v_cvt_pk_bf16_f32 v180, v180, v180
v_lshl_or_b32 v180, v180, 16, v13
s_mov_b64 exec, 0xffff""")
    g.vm(f"buffer_store_dword v180, v12, {srd(sWS)}, s56 offen sc1", "m2s")
    g("s_mov_b64 exec, -1")
def wo_pull():
    if not P["wopull"]: return
    g(f"s_sub_u32 s55, s{sI}, 28\ns_lshl_b32 s55, s55, 2\ns_add_u32 s55, s55, s3\ns_mul_i32 s55, s55, {448*128}\nv_lshlrev_b32 v30, 7, v1")
    for n in range(7):
        g.vm(f"buffer_load_dword v{184+n}, v30, {srd(sWO)}, s55 offen", "wp")
        g("s_add_u32 s55, s55, 8192")
def cand_poll(L):
    g(f"""v_and_b32 v30, 31, v1
v_lshlrev_b32 v30, 7, v30
s_mov_b32 s55, {CAND}
{L}_cp:
buffer_load_dwordx4 v[20:23], v30, {srd(sWS)}, s55 offen sc1
s_waitcnt vmcnt(0)
v_cmp_ne_u32 vcc, s{sTAG}, v22""")
    spin(f"{L}_cp", f"{L}_cok")
    g(f"""{L}_cok:
v_max_f32_dpp v24, v20, v20 row_ror:8 {DPP}
v_max_f32_dpp v24, v24, v24 row_ror:4 {DPP}
v_max_f32_dpp v24, v24, v24 row_ror:2 {DPP}
v_max_f32_dpp v24, v24, v24 row_ror:1 {DPP}
v_mov_b32 v25, v24
v_permlane16_swap_b32 v24, v25
v_max_f32 v24, v24, v25
v_cmp_eq_f32 vcc, v24, v20
s_ff1_i32_b64 s45, vcc
s_and_b32 s45, s45, 31""")
g("s_cmp_ge_u32 s44, 27\ns_cbranch_scc1 L_fz")
mod_src(44); tile_dma(0, sWM, 4, 50, 8*7680, "t0")
g(f"s_lshl_b32 s51, s44, 7\ns_mul_i32 s55, s3, {8*3456}\ns_add_u32 s51, s51, s55\ns_mov_b32 s52, s51")
wo_pull()
tile_dma(1, sWG, 5, 51, 8*3456, "t1")
g.wait(vm="t0"); g("s_barrier")
mod_consume(0, 44)
tile_dma(0, sWU, 5, 52, 8*3456, "t2")
g.wait(vm="t1"); g("s_barrier")
tile_tr(1, lambda o: ar(o, 2)); g("s_waitcnt lgkmcnt(0)\ns_barrier")
g("s_mul_i32 s51, s44, 81920\ns_add_u32 s51, s51, s49")
tile_dma(1, sWD, 8, 51, 1024, "t3")
g.wait(vm="t2"); g("s_barrier")
tile_tr(0, lambda o: ar(80+o, 2))
g("s_waitcnt vmcnt(0) lgkmcnt(0)\ns_barrier"); g.vmq[:] = []
for t in range(10):
    for ks in range(2):
        for hh in range(2): g(f"ds_read_b64_tr_b16 {ar(160+(t*2+ks)*4+2*hh,2)}, v11 offset:{ks*40960+hh*5120+t*32}")
g(f"""s_waitcnt lgkmcnt(0)
v_mov_b32 v20, 0
ds_write_b32 v12, v20 offset:8192
v_mul_u32_u24 v30, 5462, v1
v_lshrrev_b32 v30, 16, v30
v_lshl_add_u32 v14, v30, 6, v8
v_add_u32 v31, 64, v1
v_mul_u32_u24 v30, 5462, v31
v_lshrrev_b32 v30, 16, v30
v_lshlrev_b32 v31, 4, v31
v_lshl_add_u32 v15, v30, 6, v31
v_cmp_gt_u32 vcc, 16, v1
s_lshl_b32 s55, s3, 11
v_add_u32 v16, s55, v8
v_cndmask_b32 v15, v255, v15, vcc
v_lshl_add_u32 v17, v3, 4, s55
s_lshl_b32 s55, s3, 5
v_lshl_add_u32 v18, v2, 1, s55
v_lshrrev_b32 v30, 2, v2
v_lshlrev_b32 v31, 4, v3
v_add_u32 v32, 128, v31""")
for q in range(4): g(f"v_cmp_eq_u32 vcc, {q}, v30\nv_cndmask_b32 v{232+q}, v32, v31, vcc")
g(f"""v_lshrrev_b32 v30, 5, v1
v_and_b32 v31, 31, v1
v_lshlrev_b32 v31, 2, v31
v_lshl_add_u32 v236, v30, 12, v31
v_cmp_gt_u32 vcc, 32, v1
s_mul_i32 s46, s3, {5*4096}
s_lshl_b32 s55, s44, 7
s_add_u32 s46, s46, s55
s_add_u32 s46, s46, {YP}
v_cndmask_b32 v237, v255, v236, vcc
s_add_u32 s47, s46, 8192
s_add_u32 s48, s46, 16384
s_mov_b32 s54, 0xffffff00
s_waitcnt lgkmcnt(0)
s_barrier""")
TS(3)
cand_poll("L_m")
TS(4)
g(f"""s_lshl_b32 s55, s45, 11
s_add_u32 s55, s55, {CROW}
L_m_rp:
buffer_load_dwordx4 v[20:23], v14, {srd(sWS)}, s55 offen sc1
buffer_load_dwordx4 v[24:27], v15, {srd(sWS)}, s55 offen sc1
s_waitcnt vmcnt(0)
ds_write_b128 v16, v[20:23]
ds_write_b128 v16, v[24:27] offset:1024
v_max3_u32 v28, v20, v21, v22
v_max3_u32 v29, v23, v24, v25
v_max3_u32 v28, v28, v26, v27
v_max_u32 v28, v28, v29
v_cmp_eq_u32 vcc, -1, v28""")
spin("L_m_rp", "L_m_rok")
g("L_m_rok:")
TS(5)
g.lgq[:] = []
for ks in range(6): g.lg(f"ds_read_b128 {vr(100+4*ks,4)}, v17 offset:{64*ks}", f"x{ks}")
mf = []; mem = {}; pre = {}
for ks in range(20):
    pre[2*ks] = [('wait', None, f"x{ks}")]
    mf += [f"v_mfma_f32_16x16x32_bf16 v[32:35], {vr(100+4*ks,4)}, {ar(4*ks,4)}, {'v[32:35]' if ks else 0}",
           f"v_mfma_f32_16x16x32_bf16 v[36:39], {vr(100+4*ks,4)}, {ar(80+4*ks,4)}, {'v[36:39]' if ks else 0}"]
    if ks + 6 < 20: mem[2*ks] = [('lg', f"ds_read_b128 {vr(100+4*(ks+6),4)}, v17 offset:{64*(ks+6)}", f"x{ks+6}")]
gaps(g, mf, mem, [], pre)
silu(32, 33)
g("v_mul_f32 v32, v32, v36\nv_cvt_pk_bf16_f32 v32, v32, v32\nds_write_b16 v18, v32 offset:8192\ns_waitcnt lgkmcnt(0)\ns_barrier")
g.lgq[:] = []
for q in range(4):
    for ks in range(2): g.lg(f"ds_read_b128 {vr(40+(q*2+ks)*4,4)}, v{232+q} offset:{8192+64*ks}", f"q{q}")
for t in range(10):
    if t < 4: g.wait(lg=f"q{t}")
    d = vr(20+4*(t//4), 4)
    for ks in range(2):
        g(f"v_mfma_f32_16x16x32_bf16 {d}, {vr(40+((t%4)*2+ks)*4,4)}, {ar(160+(t*2+ks)*4,4)}, {d if (t%4 or ks) else 0}")
for a in range(3):
    g(f"v_and_or_b32 v{20+4*a}, v{20+4*a}, s54, v19\nbuffer_store_dword v{20+4*a}, v{237 if a==2 else 236}, {srd(sWS)}, s{46+a} offen sc1")
TS(6)
g("s_branch L_fin")
g("L_fz:")
g.vmq[:] = []
wo_pull()
g(f"s_mov_b32 s46, s44\nbuffer_load_dword v191, v12, {srd(sOUT)}, 0 offen\ns_mov_b32 s55, 2621184\nbuffer_load_dword v192, v12, {srd(sOUT)}, s55 offen\nL_fz_u:")
mod_src(46); tile_dma(0, sWM, 4, 50, 8*7680, "t0")
g("s_waitcnt vmcnt(0)\ns_barrier")
mod_consume(0, 46)
g("s_add_u32 s46, s46, 5\ns_cmp_lt_u32 s46, 40\ns_cbranch_scc1 L_fz_u")
g.vmq[:] = []
g(f"""s_sub_u32 s46, s44, 27
s_lshl_b32 s46, s46, 2
s_add_u32 s46, s46, s3
v_cmp_gt_u32 vcc, 32, v1
v_lshlrev_b32 v14, 3, v1
v_and_b32 v15, 7, v1
v_cndmask_b32 v16, v255, v8, vcc
v_cndmask_b32 v250, 0, -1, vcc
v_lshlrev_b32 v15, 4, v15
s_mov_b32 s55, {MOD2+2560}
s_lshl_b32 s56, s46, 7
s_add_u32 s56, s56, {MOD2+3*2560}
s_mov_b32 s57, 0x05040100
buffer_load_dwordx2 v[44:45], v14, {srd(sWR)}, 0 offen
buffer_load_dwordx2 v[46:47], v14, {srd(sWR)}, 0 offen offset:512
buffer_load_dwordx2 v[48:49], v14, {srd(sWR)}, 0 offen offset:1024
L_fz_mp:
buffer_load_dwordx4 v[20:23], v8, {srd(sWS)}, s55 offen sc1
buffer_load_dwordx4 v[24:27], v8, {srd(sWS)}, s55 offen offset:1024 sc1
buffer_load_dwordx4 v[28:31], v16, {srd(sWS)}, s55 offen offset:2048 sc1
buffer_load_dwordx4 v[56:59], v15, {srd(sWS)}, s56 offen sc1
s_waitcnt vmcnt(0)""")
for n, b in enumerate((28, 20, 24, 56)):
    g(f"v_perm_b32 v32, v{b+1}, v{b}, s57\nv_perm_b32 v33, v{b+3}, v{b+2}, s57\nv_xor_b32 v32, s{sTAG}, v32\nv_xor_b32 v33, s{sTAG}, v33")
    g("v_or_b32 v34, v32, v33\nv_and_b32 v34, v34, v250" if n == 0 else "v_or3_b32 v34, v34, v32, v33")
g("v_cmp_ne_u32 vcc, 0, v34\ns_sleep 4")
spin("L_fz_mp", "L_fz_mok")
g("L_fz_mok:\nv_mov_b32 v60, 0")
for k in range(4): g(f"v_and_b32 v{56+k}, 0xffff0000, v{56+k}")
for k in range(12):
    g(f"v_and_b32 v{20+k}, 0xffff0000, v{20+k}")
    g(f"v_lshlrev_b32 v32, 16, v{44+k//2}" if k % 2 == 0 else f"v_and_b32 v32, 0xffff0000, v{44+k//2}")
    g(f"v_fmac_f32 v60, v{20+k}, v32")
for r in (8, 4, 2, 1): g(f"v_add_f32_dpp v60, v60, v60 row_ror:{r} {DPP}")
g("v_mov_b32 v61, v60\nv_permlane16_swap_b32 v60, v61\nv_add_f32 v60, v60, v61\nv_mov_b32 v61, v60\nv_permlane32_swap_b32 v60, v61\nv_add_f32 v60, v60, v61")
g(f"""v_cmp_gt_u32 vcc, 24, v1
s_mul_i32 s47, s46, 86
s_lshr_b32 s47, s47, 8
v_cndmask_b32 v17, v255, v8, vcc
v_cndmask_b32 v250, 0, -1, vcc
s_lshl_b32 s48, s46, 12
s_add_u32 s48, s48, {YP}
v_mov_b32 v18, 0""")
assert all((f*86 >> 8) == f//3 for f in range(20))
TS(3)
cand_poll("L_f")
TS(4)
g(f"""v_readlane_b32 s50, v21, s45
v_readlane_b32 s51, v23, s45
v_add_f32 v60, v60, v24
v_cvt_pk_bf16_f32 v60, v60, v60
v_lshlrev_b32 v60, 16, v60
v_mul_f32 v60, 0xbfb8aa3b, v60
v_exp_f32 v60, v60
s_lshl_b32 s55, s45, 12
s_add_u32 s56, s46, s47
s_lshl_b32 s56, s56, 7
s_add_u32 s55, s55, s56
s_add_u32 s55, s55, {CBASE}
s_and_b32 s51, s51, 127
s_lshl_b32 s56, s51, 3
s_add_u32 s56, s56, s47
s_lshl_b32 s56, s56, 4
s_add_u32 s56, s56, {OUTD}
v_add_f32 v60, 1.0, v60
v_rcp_f32 v60, v60
s_and_b32 s50, s50, 2047
s_mul_i32 s50, s50, 1280
s_lshl_b32 s57, s46, 6
s_add_u32 s50, s50, s57
v_mul_f32 v56, v56, v60
v_mul_f32 v57, v57, v60
v_mul_f32 v58, v58, v60
v_mul_f32 v59, v59, v60
L_fz_bp:
buffer_load_dwordx4 v[52:55], v15, {srd(sWS)}, s55 offen sc1
buffer_load_dword v62, v18, {srd(sWS)}, s56 offen sc1
s_waitcnt vmcnt(0)
v_perm_b32 v32, v53, v52, s{sPA}
v_perm_b32 v33, v55, v54, s{sPB}
v_bitop3_b32 v32, v32, v33, s{sTAG} bitop3:0x56
v_xor_b32 v33, s{sTAG}, v62
v_or_b32 v32, v32, v33
v_cmp_ne_u32 vcc, 0, v32""")
spin("L_fz_bp", "L_fz_bok")
g("L_fz_bok:\ns_mov_b32 s55, 0xffffff00")
for k in range(4): g(f"v_and_b32 v{52+k}, s55, v{52+k}")
TS(5)
g("L_fz_yp:")
for n in range(4): g(f"buffer_load_dwordx4 {vr(20+4*n,4)}, v{17 if n==3 else 8}, {srd(sWS)}, s48 offen offset:{1024*n} sc1")
g("s_waitcnt vmcnt(0)")
for n in range(4):
    b = 20 + 4*n
    g(f"v_perm_b32 v36, v{b+1}, v{b}, s{sPA}\nv_perm_b32 v37, v{b+3}, v{b+2}, s{sPB}\nv_bitop3_b32 v{38+n}, v36, v37, s{sTAG} bitop3:0x56")
g("v_and_b32 v41, v41, v250\nv_or3_b32 v38, v38, v39, v40\nv_or_b32 v38, v38, v41\nv_cmp_ne_u32 vcc, 0, v38")
spin("L_fz_yp", "L_fz_yok")
g("L_fz_yok:")
TS(6)
for k in range(16): g(f"v_and_b32 v{20+k}, s55, v{20+k}")
g("v_pk_add_f32 v[20:21], v[20:21], v[24:25]\nv_pk_add_f32 v[22:23], v[22:23], v[26:27]\nv_pk_add_f32 v[28:29], v[28:29], v[32:33]\nv_pk_add_f32 v[30:31], v[30:31], v[34:35]\nv_pk_add_f32 v[20:21], v[20:21], v[28:29]\nv_pk_add_f32 v[22:23], v[22:23], v[30:31]")
for k in range(4): g(f"v_add_f32_dpp v{20+k}, v{20+k}, v{20+k} row_ror:8 {DPP}")
for sw in (16, 32):
    for k in range(4): g(f"v_mov_b32 v{24+k}, v{20+k}")
    for k in range(4): g(f"v_permlane{sw}_swap_b32 v{20+k}, v{24+k}")
    g("v_pk_add_f32 v[20:21], v[20:21], v[24:25]\nv_pk_add_f32 v[22:23], v[22:23], v[26:27]")
g(f"""v_pk_fma_f32 v[20:21], v[20:21], v[56:57], v[52:53]
v_pk_fma_f32 v[22:23], v[22:23], v[58:59], v[54:55]
v_cvt_pk_bf16_f32 v20, v20, v21
v_cvt_pk_bf16_f32 v21, v22, v23
s_mov_b64 exec, 0xff
buffer_store_dwordx2 v[20:21], v14, {srd(sOUT)}, s50 offen sc1
s_cmp_eq_u32 s46, 0
s_cbranch_scc0 L_fz_e
s_add_u32 s55, s{sE}, 1
v_mov_b32 v22, s55
s_mov_b64 exec, 1
buffer_store_dword v22, v18, {srd(sWS)}, 0 offen sc1
L_fz_e:
s_mov_b64 exec, -1""")
TS(7)
g("L_fin:")
if P["probe"] >= 0:
    n = P["probe"]
    g(f"s_cmp_ge_u32 s2, 224\ns_cbranch_scc1 L_end" if P["pwg"] < 0 else f"s_cmp_lg_u32 s2, {P['pwg']}\ns_cbranch_scc1 L_end")
    g(f"s_waitcnt lgkmcnt(0)\ns_sub_u32 s55, s{64+2*n}, s64\ns_lshl_b32 s55, s55, 1\ns_add_u32 s55, s55, 5000\nL_pr:\ns_memrealtime s[56:57]\ns_waitcnt lgkmcnt(0)\ns_sub_u32 s56, s56, s64\ns_cmp_lt_u32 s56, s55\ns_cbranch_scc1 L_pr")
elif DEV:
    g("s_waitcnt vmcnt(0)")
    TS(15)
    g(f"s_waitcnt lgkmcnt(0)\ns_lshl_b32 s55, s2, 2\ns_add_u32 s55, s55, s3\ns_lshl_b32 s55, s55, 7\ns_add_u32 s55, s55, {TSB}\nv_mov_b32 v20, 0")
    for n in range(16): g(f"v_writelane_b32 v20, s{64+2*n}, {n}")
    g(f"v_writelane_b32 v20, s{sSPIN}, 16\nv_lshlrev_b32 v21, 2, v1\ns_mov_b64 exec, 0x1ffff\nbuffer_store_dword v20, v21, {srd(sWS)}, s55 offen")
g("L_end:\ns_endpgm")

lines, added = pad_hazards(g.l)
HDR = open("/code/" + NAME + ".s.ref").read().split("; Override launch")[0]
txt = HDR + f"""; generated by dev/gen.py {' '.join(sys.argv[2:])}
; @launch grid=(256,1,1) block=(256,1,1) lds=163840
.amdgcn_target "amdgcn-amd-amdhsa--gfx950"
.text
.globl {NAME}_kernel
.p2align 8
.type {NAME}_kernel,@function
{NAME}_kernel:
""" + "\n".join(lines) + f"""
.fill ({NAME}_kernel + 49664 - .) / 4, 4, 0xbf800000
.section .rodata,"a"
.p2align 6
.amdhsa_kernel {NAME}_kernel
  .amdhsa_next_free_vgpr 512
  .amdhsa_next_free_sgpr 102
  .amdhsa_accum_offset 256
  .amdhsa_group_segment_fixed_size 0
  .amdhsa_kernarg_size 104
  .amdhsa_user_sgpr_count 2
  .amdhsa_user_sgpr_kernarg_segment_ptr 1
  .amdhsa_system_sgpr_workgroup_id_x 1
  .amdhsa_float_denorm_mode_32 3
  .amdhsa_float_denorm_mode_16_64 3
.end_amdhsa_kernel
"""
open(sys.argv[1], "w").write(txt)
print(f"{len(lines)} lines, {added} pad states")
```

```python
import re

class G:
    def __init__(self):
        self.l = []; self.vmq = []; self.lgq = []
    def __call__(self, s):
        for x in s.split("\n"):
            x = x.strip()
            if x: self.l.append(x)
        return self
    def vm(self, s, tag):
        self(s); self.vmq.append(tag)
    def lg(self, s, tag):
        self(s); self.lgq.append(tag)
    def _cnt(self, q, tags, mx):
        if tags is None: return None
        if tags == "*":
            if not q: return None
            del q[:]; return 0
        if isinstance(tags, str): tags = [tags]
        idx = [i for i, t in enumerate(q) if t in tags]
        if not idx: return None
        n = len(q) - 1 - idx[-1]
        if n > mx:
            n = mx
        del q[:len(q) - n]
        return n
    def waitstr(self, vm=None, lg=None):
        a = self._cnt(self.vmq, vm, 63); b = self._cnt(self.lgq, lg, 15)
        p = []
        if a is not None: p.append(f"vmcnt({a})")
        if b is not None: p.append(f"lgkmcnt({b})")
        return "s_waitcnt " + " ".join(p) if p else None
    def wait(self, vm=None, lg=None):
        s = self.waitstr(vm, lg)
        if s: self(s)
    def item(self, it):
        if isinstance(it, str): self(it)
        elif it[0] == 'vm': self.vm(it[1], it[2])
        elif it[0] == 'lg': self.lg(it[1], it[2])
        elif it[0] == 'wait': self.wait(it[1], it[2])
        elif it[0] == 's': self(it[1])
        else: raise ValueError(it)

def regs(op):
    op = op.strip()
    neg = op.lstrip("-")
    if neg.startswith("abs(") or neg.startswith("|"): neg = neg.strip("|").replace("abs(", "").rstrip(")")
    m = re.fullmatch(r"([vas])(\d+)", neg)
    if m: return {(m.group(1), int(m.group(2)))}
    m = re.fullmatch(r"([vas])\[(\d+):(\d+)\]", neg)
    if m: return {(m.group(1), i) for i in range(int(m.group(2)), int(m.group(3)) + 1)}
    if neg in ("vcc", "vcc_lo", "vcc_hi"): return {("s", "vcc")}
    if neg in ("exec", "exec_lo", "exec_hi"): return {("s", "exec")}
    if neg == "m0": return {("s", "m0")}
    return set()

TRANS = ("v_exp_f32", "v_log_f32", "v_rcp_f32", "v_rsq_f32", "v_sqrt_f32")
class I:
    def __init__(self, t):
        self.t = t
        p = t.split(None, 1); self.mn = mn = p[0]
        ops = [o.strip() for o in p[1].split(",")] if len(p) > 1 else []
        clean = []
        for o in ops:
            clean.append(o.split()[0] if o else o)
        self.lds = " lds" in t
        R = [regs(o) for o in clean]
        U = lambda xs: set().union(*xs) if xs else set()
        self.cls = "other"; self.d = set(); self.s = set(); self.ab = set(); self.c = set(); self.lanesel = set(); self.data = set()
        if mn.startswith("v_mfma"):
            self.cls = "mfma"; self.d = R[0]; self.ab = R[1] | R[2]; self.c = R[3]; self.s = self.ab | self.c
        elif mn.startswith("v_"):
            self.cls = "valu"
            if "swap" in mn: self.d = R[0] | R[1]; self.s = set(self.d)
            else:
                self.d = R[0]; self.s = U(R[1:])
                if mn.startswith(("v_fmac", "v_dot2c", "v_writelane")) or "_dpp" in mn: self.s |= R[0]
                if mn.startswith(("v_readlane", "v_writelane")): self.lanesel = R[2]
        elif mn.startswith(("buffer_", "global_")):
            self.cls = "vmem"
            if "load" in mn and not self.lds: self.d = R[0]; self.s = U(R[1:])
            else: self.s = U(R)
            if mn.startswith("buffer_store") and mn.endswith(("x3", "x4")): self.data = R[0]
        elif mn.startswith("ds_"):
            self.cls = "ds"
            if "read" in mn or "swizzle" in mn or "permute" in mn: self.d = R[0]; self.s = U(R[1:])
            else: self.s = U(R)
        elif mn.startswith("s_"):
            self.cls = "salu"
            if R and not mn.startswith(("s_cmp", "s_waitcnt", "s_cbranch", "s_branch", "s_nop", "s_sleep", "s_bitcmp")): self.d = R[0]; self.s = U(R[1:])
        self.states = 1
        if mn == "s_nop": self.states = int(ops[0]) + 1
        self.trans = mn.startswith(TRANS); self.dot = mn.startswith("v_dot"); self.dpp = "_dpp" in mn
        self.perm = mn.startswith("v_permlane"); self.rdl = mn.startswith(("v_readlane", "v_readfirstlane"))

def need(p, c):
    n = 0
    V = lambda S: {r for r in S if r[0] in "va"}
    S_ = lambda S: {r for r in S if r[0] == "s"}
    if p.cls == "valu":
        if V(p.d) & V(c.s):
            if c.perm or c.dpp or c.cls == "mfma": n = max(n, 2)
            if c.rdl: n = max(n, 1)
            if p.trans and c.cls == "valu" and not c.trans: n = max(n, 1)
        if p.dot and (V(p.d) & (V(c.s) | V(c.d))) and c.cls in ("valu", "mfma", "vmem", "ds"):
            if c.mn != p.mn: n = max(n, 3)
        if S_(p.d) & S_(c.s):
            if c.cls == "valu": n = max(n, 4 if (S_(p.d) & c.lanesel) else 2)
            if c.cls == "vmem": n = max(n, 5)
    if p.cls == "mfma":
        if c.cls == "mfma":
            if p.d & c.ab: n = max(n, 8)
            if p.d & c.c and p.d != c.c: n = max(n, 6)
            if p.d & c.c and p.d == c.c and p.mn != c.mn: n = max(n, 6)
        elif c.cls in ("valu", "vmem", "ds"):
            if p.d & (c.s | c.d): n = max(n, 8)
            if c.cls == "valu" and p.c & c.d: n = max(n, 3)
    if p.data and (p.data & c.d): n = max(n, 2 if c.cls == "valu" else 1)
    if p.cls == "salu" and ("s", "m0") in p.d and c.cls == "vmem" and c.lds: n = max(n, 1)
    return n

def pad_hazards(lines, verbose=False):
    out = []; hist = []; added = 0
    for t in lines:
        if t.endswith(":") or t.startswith((".", ";")):
            out.append(t); continue
        c = I(t)
        dist = 0; req = 0
        for p in reversed(hist):
            k = need(p, c) - dist
            if k > req: req = k
            dist += p.states
            if dist >= 8: break
        if req > 0:
            nop = I(f"s_nop {req-1}"); out.append(nop.t); hist.append(nop); added += req
            if verbose: print("pad", req, "before", t)
        out.append(t); hist.append(c)
        if len(hist) > 12: hist = hist[-12:]
    return out, added

def kind(it):
    if isinstance(it, str): return "S" if it.startswith("s_") else "V"
    return "M" if it[0] in ("vm", "lg") else "S"
def cost(it):
    t = it if isinstance(it, str) else (it[1] if isinstance(it[1], str) else "")
    k = kind(it)
    if k == "M":
        if t.startswith(("ds_write_b128", "buffer_store_dwordx4")): return 6
        if t.startswith(("ds_write_b64", "buffer_store_dwordx2")): return 4
        if t.startswith("ds_write"): return 3
        return 2
    if k == "V" and t.startswith(("v_exp", "v_rcp", "v_rsq", "v_permlane")): return 2
    return 1

def gaps(g, mfmas, mem, valu, pre=None, tail=None, wgap=0, wdep=2):
    pre = {k: list(v) for k, v in (pre or {}).items()}
    n = len(mfmas)
    memop = {}; sq = {k: [] for k in range(-1, n)}
    for j, its in mem.items():
        k = [kind(x) for x in its].index("M")
        memop[j] = its[k]
        sq[j-1] += its[:k]
        sq[j] += its[k+1:]
    for j, its in pre.items(): sq[j-1] = sq[j-1] + its
    sq[n-1] += (tail or [])
    vq = list(valu); over = 0; lastw = -99; wr = {}
    for it in sq[-1]: g.item(it)
    for i, m in enumerate(mfmas):
        g(m)
        used = 0
        if i in memop:
            g.item(memop[i]); used += cost(memop[i])
        for it in sq[i]:
            n0 = len(g.l); g.item(it); used += len(g.l) - n0
        k0 = 0; blocked = set()
        while k0 < len(vq) and vq[k0][0] <= i:
            it = vq[k0][1]; k = kind(it)
            if it[0] == "gapwait":
                if k0: break
                if it[1] > 0:
                    vq[0] = (vq[0][0], ("gapwait", it[1] - 1)); break
                vq.pop(0); continue
            if k == "M":
                busy = (any((j in memop and memop[j][0] == "lg") for j in (i+1, i+2)) or i >= n - 2) if cost(it) >= 6 else False
                if used or busy or k0 or i - lastw < wgap or any(i - wr.get(r, -99) < wdep for r in I(it[1]).s):
                    blocked |= I(it[1]).s; k0 += 1; continue
                used += cost(it)
                if cost(it) > 2: lastw = i
            elif k == "V":
                st = max(used, 1)
                if st + cost(it) > 3 or (I(it).d & blocked): break
                used = st + cost(it)
                for r in I(it).d: wr[r] = i
            else:
                if used + 1 > 3 or k0: break
                used += 1
            g.item(it); vq.pop(k0)
        over += max(0, used - 3)
    g.over = getattr(g, "over", 0) + over
    return vq

def listsched(items, keep_mem_order=True):
    txt = [it if isinstance(it, str) else it[1] for it in items]
    ins = [I(t) for t in txt]
    n = len(ins)
    EX = ("s", "exec")
    rd = []; wr = []
    for x in ins:
        r = set(x.s); w = set(x.d)
        if x.cls in ("valu", "vmem", "ds"): r.add(EX)
        if x.cls == "vmem" and x.lds: r.add(("s", "m0"))
        if x.cls == "salu": r.add("scc"); w.add("scc")
        if keep_mem_order and x.cls in ("vmem", "ds"): r.add(x.cls); w.add(x.cls)
        if x.mn.startswith("v_cndmask") and "vcc" in x.t: r.add(("s", "vcc"))
        rd.append(r); wr.append(w)
    pred = [set() for _ in range(n)]; succ = [set() for _ in range(n)]
    for j in range(n):
        for i in range(j):
            if (wr[i] & rd[j]) or (wr[i] & wr[j]) or (rd[i] & wr[j]):
                pred[j].add(i); succ[i].add(j)
    def c(i):
        x = ins[i]
        if x.cls == "mfma": return 8
        return 4*cost(items[i])
    prio = [0]*n
    for i in reversed(range(n)):
        prio[i] = c(i) + max([prio[j] + 4*need(ins[i], ins[j]) for j in succ[i]], default=0)
    done = {}; order = []; t = 0; state = 0; mfree = 0; vfree = 0
    left = set(range(n))
    while left:
        best = None
        for j in left:
            if any(i not in done for i in pred[j]): continue
            x = ins[j]
            stall = 4*max([need(ins[i], x) - (state - done[i] - 1) for i in pred[j]] + [0])
            ti = t + stall
            if x.cls == "mfma": ti = max(ti, mfree)
            elif x.cls == "valu":
                ti = max(ti, vfree)
                if x.mn.startswith(("v_pk_", "v_dot")): ti = max(ti, mfree + 12 if mfree > t - 12 else ti)
            key = (ti - t, -prio[j], j)
            if best is None or key < best[0]: best = (key, j, ti, stall)
        _, j, ti, stall = best
        x = ins[j]
        state += stall//4
        done[j] = state; state += 1
        if x.cls == "mfma":
            mfree = ti + 16; vfree = ti + 8; t = ti + 4
        else: t = ti + 4*cost(items[j])
        order.append(items[j]); left.remove(j)
    return order, t
```

```python
import sys, struct, math
from gl import *
NAME = "adaLN_cond__sliding_local_dilated__moe_arch_mod__prompt"
P = dict(dev=0, lead=5, lpk=4, odelay=50, wopull=0, spin=1 << 16, adelay=0, fast=1, stpre=1, attpk=3, astep=14, no=12, ostep=6, x0=10, x1=100, flpos=50, drop=0, mpace=75, wdep=2, wsplit=2, wgap=2, vpk=48, maxlead=6, pz0=6, nold=0, xpk=2, wo0=2, rot=1, ts=0, cyc=0, probe=-1, pwg=-1, wsc1=1)
for a in sys.argv[2:]:
    k, v = a.split("="); P[k] = int(v)
DEV = P["dev"]
f2u = lambda f: struct.unpack("<I", struct.pack("<f", f))[0]

PUB1, FLG, PFL, MOD2, STATS, CAND, CROW, CBASE, OUTD, YP, WPP, OPP, TSB = 0x1000, 0xD0000, 0xE0000, 0x10000, 0x20000, 0x60000, 0x70000, 0x80000, 0xA0000, 0xB0000, 0x100000, 0x400000, 0x700000
WSZ = 0x800000
OOB = 0x40000000
HB, XR, OST, MV, AM, GS = 56320, 122880, 138240, 152320, 135168, 158720
WST = 0
sWS, sX, sWQ, sWM, sC, sWO, sWR, sOUT, sPZ = 4, 8, 12, 16, 20, 24, 28, 32, 36
sTAG, sE, sXC, sI, sHG, sXB, sOB, sRB3, sCG = 40, 41, 42, 43, 44, 45, 46, 47, 96
sSPIN, sPA, sPB = 97, 98, 99
srd = lambda s: f"s[{s}:{s+3}]"
g = G()
nts = [0]
SETS = {0: "start Wland p1done ln3done gathered mfma0 qkvend ostored bar6 o0chk woend stpub stok candpub mainend".split(),
        1: "start karg addr Wland wsiss ln0 p1done ln1 ln2 ln3done gathered ln4 bar3b mfma0".split(),
        2: "start gathered mod0 mfma0 k1 k2 k4 k8 k12 k16 k19 qkvend att1 ostored".split(),
        3: "start qkvend att1 att2 att3 att4 bar5 ostored bar6 mvok oiss plend o0chk o5 woend".split(),
        5: "start k1 k2 k3 k4 k5 k6 k7 k8 k9 k10 k11 k12 k13 k14".split(),
        6: "start k7 k8 k9 k10 k11 k12 k13 k14 k15 k16 k17 k18 k19 qkvend".split(),
        4: "start woend stpub stok amw amb candpub mainend".split()}
SVC = "start - - ready cand row ypub stored t0 t1 t2 t3".split()
def TS(name, svc=False):
    names = SVC if svc else SETS[P["ts"]]
    if name == "fin": n = 15
    elif name in names: n = names.index(name)
    else: return
    if DEV: g(f"{'s_memtime' if P['cyc'] else 's_memrealtime'} s[{64+2*n}:{65+2*n}]")
def vr(b, n): return f"v[{b}:{b+n-1}]" if n > 1 else f"v{b}"
def ar(b, n): return f"a[{b}:{b+n-1}]"
def spin(lab_back, lab_out):
    g(f"s_add_u32 s{sSPIN}, s{sSPIN}, 1\ns_cmp_gt_u32 s{sSPIN}, {P['spin']}\ns_cbranch_scc1 {lab_out}\ns_cbranch_vccnz {lab_back}")
def silu(v, t):
    g(f"v_mul_f32 v{t}, 0xbfb8aa3b, v{v}\nv_exp_f32 v{t}, v{t}\nv_add_f32 v{t}, 1.0, v{t}\nv_rcp_f32 v{t}, v{t}\nv_mul_f32 v{v}, v{v}, v{t}")
DPP = "row_mask:0xf bank_mask:0xf"
ool = []

g("s_cmp_ge_u32 s2, 256\ns_cbranch_scc1 L_end")
TS("start")
g(f"""s_load_dwordx4 s[8:11], s[0:1], 0
s_load_dwordx4 s[20:23], s[0:1], 64
s_load_dwordx2 s[4:5], s[0:1], 96
s_getpc_b64 s[48:49]
v_lshrrev_b32 v4, 6, v0
v_and_b32 v1, 63, v0
s_lshr_b32 s{sI}, s2, 3
v_readfirstlane_b32 s3, v4
v_mad_u32_u24 v5, v4, 3, v1
s_mul_i32 s50, s{sI}, 1536
v_lshl_add_u32 v5, v5, 7, s50
s_mov_b64 exec, 7""")
g.vm("global_load_dword v19, v5, s[48:49]", "pf")
g(f"""s_mov_b64 exec, -1
s_and_b32 s{sXC}, s2, 7
v_and_b32 v2, 15, v1
v_lshrrev_b32 v3, 4, v1
v_mov_b32 v29, 0
s_mov_b32 s{sWS+2}, {WSZ}
s_mov_b32 s{sWS+3}, 0x20000
s_lshl_b32 s49, s3, 10
s_cmp_ge_u32 s2, 224
s_cbranch_scc1 L_svc
s_mov_b32 m0, s49
s_mov_b32 s{sWQ+3}, 0x20000
s_cmp_lt_u32 s2, 160
s_cbranch_scc1 L_roleW""")
assert all((v*13 >> 8) == v//20 for v in range(64))
g(f"""s_sub_u32 s50, s2, 160
s_mul_i32 s52, s50, 13
s_lshr_b32 s52, s52, 8
s_mul_i32 s53, s52, 20
s_sub_u32 s53, s50, s53
s_mul_i32 s51, s52, 28
s_add_u32 s51, s51, s3
s_mul_i32 s51, s51, 61440
s_lshl_b32 s54, s53, 7
s_add_u32 s51, s51, s54
s_mul_i32 s54, s52, 448
s_and_b32 s55, s3, 1
s_lshl_b32 s55, s55, 2
v_and_b32 v20, 1, v3
v_lshl_or_b32 v20, v20, 1, s55
v_and_b32 v21, 7, v1
v_xor_b32 v20, v20, v21
v_lshrrev_b32 v21, 3, v1
v_mul_u32_u24 v21, 480, v21
v_add_lshl_u32 v20, v20, v21, 4
v_lshlrev_b32 v28, 3, v1
s_mov_b32 s{sWQ+2}, 4915200
s_mov_b32 s{sPZ+2}, 0
s_waitcnt lgkmcnt(0)
s_mov_b32 s{sWQ}, s22
s_mov_b32 s{sWQ+1}, s23
s_mov_b32 s{sC+2}, 1280
s_mov_b32 s{sC+3}, 0x20000
buffer_load_dwordx2 v[40:41], v28, {srd(sC)}, s54 offen""")
for n in range(7):
    g(f"buffer_load_dwordx4 v20, {srd(sWQ)}, s51 offen nt lds")
    if n < 6: g(f"s_add_u32 m0, m0, 4096\ns_add_u32 s51, s51, {32*7680}")
g(f"""s_lshl_b32 s22, s50, 8
s_lshl_b32 s23, s3, 6
s_add_u32 s22, s22, s23
s_add_u32 s22, s22, {PUB1}
s_branch L_rolej""")
assert all((u*1639 >> 16) == u//40 for u in range(1024))
g("L_roleW:\ns_mov_b32 s55, 640\nv_lshlrev_b32 v24, 4, v0")
for n in range(4):
    if n: g(f"v_add_u32 v25, {256*n}, v0\nv_add_u32 v24, 4096, v24")
    g(f"v_mul_u32_u24 v26, 1639, v{25 if n else 0}\nv_lshrrev_b32 v26, 16, v26\nv_mad_u32_u24 v{20+n}, v26, s55, v24")
g(f"""s_lshr_b32 s50, s2, 1
s_and_b32 s52, s2, 1
s_mul_i32 s51, s50, 30720
s_mul_i32 s53, s52, 640
s_add_u32 s51, s51, s53
s_mov_b32 s{sWQ+2}, 2457600
s_mov_b32 s{sPZ+2}, {WSZ}
s_waitcnt lgkmcnt(0)
s_mov_b32 s{sWQ}, s10
s_mov_b32 s{sWQ+1}, s11""")
TS("karg")
for n in range(4):
    g.vm(f"buffer_load_dwordx4 v{20+n}, {srd(sWQ)}, s51 offen nt lds", "W")
    if n < 3: g("s_add_u32 m0, m0, 4096")
g("L_rolej:")
g.vm(f"buffer_load_dword v42, v29, {srd(sWS)}, 0 offen sc1", "E")
g(f"""s_mov_b32 s{sX+2}, 2621440
s_mov_b32 s{sX+3}, 0x20000
s_lshr_b32 s55, s{sXC}, 2
s_bfe_u32 s56, s{sXC}, 0x10001
s_mul_i32 s56, s56, 7
s_lshr_b32 s57, s{sI}, 2
s_add_u32 s56, s56, s57
s_mul_i32 s57, s56, 73
s_lshl_b32 s{sXB}, s57, 1
s_add_u32 s{sXB}, s{sXB}, s55
s_mul_i32 s{sXB}, s{sXB}, 1280
s_and_b32 s63, s{sI}, {P['rot']}
s_mul_i32 s62, s63, 122880
s_add_u32 s61, s{sXB}, s62
v_lshrrev_b32 v5, 4, v0
v_mul_u32_u24 v4, 2560, v5
v_lshl_add_u32 v4, v2, 4, v4""")
def xl(i):
    o = [('vm', f"buffer_load_dwordx4 {vr(100+(i*5+c)*4,4)}, v4, {srd(sX)}, s61 offen offset:{256*c}", f"x{i}") for c in range(5)]
    nx = {0: "s_add_u32 s61, s61, 40960", 1: f"s_add_u32 s61, s{sXB}, 81920", 2: f"s_sub_u32 s61, s{sXB}, s62\ns_add_u32 s61, s61, 122880", 3: "s_add_u32 s61, s61, 40960", 4: ""}[i]
    return [[x] for x in o[:4]] + [[o[4], ('s', nx)]]
def emit(groups):
    for gr in groups:
        for it in gr: g.item(it)
def sprinkle(text, groups, lo=0.0, hi=1.0):
    L = [x for x in text if x]
    n = len(groups)
    pos = [int(len(L)*(lo + (hi-lo)*k/max(1, n))) for k in range(n)]
    for k, x in enumerate(L):
        while groups and pos[0] <= k:
            pos.pop(0); emit([groups.pop(0)])
        g.item(x)
    emit(groups)
g(f"""s_load_dwordx2 s[{sWO}:{sWO+1}], s[0:1], 16
s_load_dwordx2 s[{sWR}:{sWR+1}], s[0:1], 32
s_load_dwordx2 s[{sOUT}:{sOUT+1}], s[0:1], 80""")
A = []
def a_(t): A.extend(x.strip() for x in t.split("\n"))
for sr, sz in ((sWO, 819200), (sWR, 1280), (sOUT, 2621440)): a_(f"s_mov_b32 s{sr+2}, {sz}\ns_mov_b32 s{sr+3}, 0x20000")
a_(f"""s_mov_b32 s{sPZ}, s{sWS}
s_mov_b32 s{sPZ+1}, s{sWS+1}
s_mov_b32 s{sPZ+3}, 0x20000
s_mov_b32 s{sSPIN}, 0
s_mov_b32 s{sPA}, 0x0c0c0400
s_mov_b32 s{sPB}, 0x04000c0c
v_mov_b32 v255, {OOB}
v_bfe_u32 v30, v1, 2, 2
v_and_b32 v31, 3, v1
v_max_u32 v32, 1, v31
v_add_u32 v32, -1, v32
v_cmp_eq_u32 vcc, 3, v3
v_lshlrev_b32 v33, 3, v31
v_mul_u32_u24 v30, 3, v30
v_cndmask_b32 v32, v3, v32, vcc
v_cndmask_b32 v33, v33, 32, vcc
v_add_u32 v30, v30, v32
v_mul_u32_u24 v30, 640, v30
s_mul_i32 s58, s3, 160
v_add3_u32 v20, v30, v33, s58
v_lshlrev_b32 v22, 4, v1
s_lshl_b32 s52, s52, 2
s_add_u32 s52, s52, s3
s_mul_i32 s52, s52, 80
s_add_u32 s52, s52, s50
s_lshl_b32 s51, s52, 12
s_add_u32 s51, s51, {WPP}
s_lshl_b32 s53, s52, 6
s_add_u32 s53, s53, {FLG}
s_and_b32 s{sHG}, s{sXC}, 1
s_lshl_b32 s{sHG}, s{sHG}, 2
s_and_b32 s58, s{sI}, 3
s_add_u32 s{sHG}, s{sHG}, s58
s_mul_i32 s58, s{sI}, 37
s_lshr_b32 s58, s58, 8
s_mul_i32 s60, s58, 7
s_sub_u32 s{sCG}, s{sI}, s60
s_lshl_b32 s{sRB3}, s{sXC}, 2
s_add_u32 s{sRB3}, s{sRB3}, s58""")
assert all((i*37 >> 8) == i//7 for i in range(32))
assert all(((max(64*r, 7) - 7)*899 >> 16) == (max(64*r, 7) - 7)//73 for r in range(16))
a_(f"""s_mul_i32 s58, s55, 14
s_add_u32 s100, s58, s56
s_lshl_b32 s100, s100, 3
s_add_u32 s100, s100, s{sHG}
s_lshl_b32 s100, s100, 6
s_add_u32 s100, s100, {PFL}
s_and_b32 s60, s{sRB3}, 15
s_lshl_b32 s60, s60, 6
s_max_u32 s60, s60, 7
s_sub_u32 s60, s60, 7
s_mul_i32 s60, s60, 899
s_lshr_b32 s60, s60, 16
s_min_u32 s60, s60, 12
s_add_u32 s60, s60, s58
s_lshl_b32 s101, s60, 3
s_bfe_u32 s60, s{sXC}, 0x10001
s_mul_i32 s60, s60, 7
s_add_u32 s60, s60, s58
s_lshl_b32 s60, s60, 1
s_and_b32 s58, s{sXC}, 1
s_add_u32 s60, s60, s58
s_lshl_b32 s21, s60, 2
s_sub_u32 s20, s{sI}, s{sCG}
s_getreg_b32 s19, hwreg(HW_REG_XCC_ID, 0, 4)""")
a_(f"""s_cmp_eq_u32 s56, 0
s_cselect_b32 s58, 0, 7
s_add_u32 s58, s58, s57
s_add_u32 s60, s57, 80
s_min_u32 s60, s60, 1024
s_sub_u32 s60, s60, s58
s_andn2_b32 s59, s58, 15
s_lshl_b32 s54, s55, 10
s_add_u32 s54, s54, s59
s_mul_i32 s{sOB}, s54, 1280
s_mul_i32 s54, s{sHG}, 2560
s_add_u32 s{sOB}, s{sOB}, s54
s_add_u32 s{sOB}, s{sOB}, {OPP}
s_sub_u32 s54, s59, s58
s_sub_u32 s59, s58, s57
s_mov_b32 s58, {OST}""")
assert all((v*410 >> 16) == v//160 for v in range(1024))
for n in range(4):
    a_(f"""v_add_u32 v30, {256*n}, v0
v_mul_u32_u24 v31, 410, v30
v_lshrrev_b32 v31, 16, v31
v_mul_u32_u24 v32, 17920, v31
v_lshl_add_u32 v32, v30, 4, v32
v_lshl_add_u32 v33, v31, 4, v2
v_add_u32 v33, s54, v33
v_cmp_gt_u32 vcc, s60, v33
v_add_u32 v33, s59, v33
v_mul_u32_u24 v34, 160, v31
v_cndmask_b32 v{11+n}, v255, v32, vcc
v_cndmask_b32 v33, 0, v33, vcc
v_sub_u32 v34, v30, v34
v_and_b32 v34, 0xf0, v34
v_mul_u32_u24 v33, 176, v33
v_add3_u32 v{15+n}, v33, v34, s58""")
a_(f"""s_mul_i32 s58, s3, 80
v_add_u32 v30, s58, v1
v_cmp_gt_u32 vcc, 16, v1
v_lshlrev_b32 v248, 4, v30
v_add_u32 v249, 1024, v248
v_add_u32 v251, {GS}, v248
v_cndmask_b32 v249, v255, v249, vcc
v_cndmask_b32 v250, 0, -1, vcc
v_cmp_le_u32 vcc, 160, v30
v_min_u32 v247, 19, v1
v_lshlrev_b32 v247, 6, v247
v_cndmask_b32 v252, 0, 1.0, vcc
v_cmp_gt_u32 vcc, 4, v1
s_mov_b32 s56, {PUB1}
s_mov_b32 s57, {PUB1+5120}
v_cndmask_b32 v246, v255, v22, vcc
s_mul_i32 s60, s{sHG}, 5120
s_mul_i32 s58, s3, 1280
s_add_u32 s60, s60, s58
s_add_u32 s60, s60, {FLG}
s_mov_b32 s58, {PUB1+10240}""")
a_(f"""v_lshlrev_b32 v30, 12, v3
v_lshl_add_u32 v30, v2, 4, v30
v_add_u32 v5, s49, v30
v_lshrrev_b32 v32, 2, v2
v_cmp_ne_u32 vcc, 1, v32
v_lshrrev_b32 v30, 4, v0
v_and_b32 v31, 7, v2
v_cndmask_b32 v6, v255, v5, vcc
v_xor_b32 v30, v30, v31
v_lshlrev_b32 v30, 4, v30
v_and_b32 v33, 3, v2
v_lshl_add_u32 v30, v33, 8, v30
v_mul_u32_u24 v32, 5120, v32
s_mov_b32 s54, {HB}
v_add3_u32 v253, v30, v32, s54
s_mul_i32 s63, s63, 3072
v_add_u32 v7, s63, v253
v_subrev_u32 v254, s63, v253
v_xor_b32 v30, v2, v3
v_lshlrev_b32 v30, 4, v30
v_lshl_add_u32 v8, v3, 8, v30
v_xor_b32 v9, 64, v8
v_add_u32 v8, s54, v8
v_add_u32 v9, s54, v9
v_lshlrev_b32 v10, 5, v2
v_add_u32 v10, {GS}, v10
s_mul_i32 s59, s{sHG}, 327680
s_add_u32 s59, s59, {WPP}""")
def st3_addr():
    o = []
    for n in range(3):
        o += [f"v_add_u32 v228, {64*n}, v1", "v_mul_u32_u24 v229, 5462, v228", "v_lshrrev_b32 v229, 16, v229", "v_mul_u32_u24 v230, 12, v229",
              "v_sub_u32 v228, v228, v230", "v_cmp_gt_u32 vcc, s16, v228", "v_mul_u32_u24 v230, 2560, v229", f"v_lshl_add_u32 v230, v228, 4, v230", f"v_subrev_u32 v230, {1024*n}, v230",
              f"v_cndmask_b32 v{235+n}, v255, v230, vcc", "v_lshrrev_b32 v230, 3, v229", "v_lshlrev_b32 v230, 1, v230", "v_xor_b32 v228, v228, v230",
              "v_mul_u32_u24 v230, 1280, v229", "v_lshl_add_u32 v230, v228, 4, v230", f"v_subrev_u32 v230, {1024*n}, v230", f"v_cndmask_b32 v{232+n}, v255, v230, vcc"]
    o += ["v_cmp_le_u32 vcc, 24, v1", "v_subrev_u32 v228, 24, v1", "v_mov_b32 v230, 0xa00", "v_cndmask_b32 v228, v1, v228, vcc", "v_cndmask_b32 v230, 0, v230, vcc",
          "v_cmp_gt_u32 vcc, s17, v228", "v_lshl_add_u32 v230, v228, 4, v230", "v_lshlrev_b32 v229, 3, v228",
          "v_cndmask_b32 v238, v255, v230, vcc", "v_cndmask_b32 v239, v255, v229, vcc", "v_cndmask_b32 v250, 0, -1, vcc",
          "v_min_u32 v228, 6, v2", "v_add_u32 v228, s20, v228", "v_and_b32 v229, 3, v228", "v_lshrrev_b32 v228, 2, v228", "v_lshl_add_u32 v228, v228, 3, v229",
          "v_cmp_gt_u32 vcc, 16, v1", "v_add_u32 v228, s21, v228", "v_add_u32 v229, s101, v1", "v_cndmask_b32 v228, v228, v229, vcc", "v_lshlrev_b32 v248, 6, v228",
          "v_mov_b32 v241, s19"]
    return o
assert all((u*5462 >> 16) == u//12 for u in range(192))
S3 = (f"""s_mul_i32 s52, s{sCG}, 192
s_mul_i32 s48, s3, 20480
s_add_u32 s48, s48, s52
s_mul_i32 s49, s3, 3072
s_lshl_b32 s53, s{sRB3}, 2
s_add_u32 s53, s53, s3
s_and_b32 s50, s53, 63
s_lshl_b32 s50, s50, 5
s_lshr_b32 s54, s53, 6
s_add_u32 s54, s50, s54
s_mul_i32 s50, s54, 1280
s_add_u32 s50, s50, s52
s_lshl_b32 s51, s52, 1
s_add_u32 s51, s51, {MOD2}
s_add_u32 s22, s51, 5120
s_mov_b32 s23, {PFL}
s_mul_i32 s12, s3, 2304
s_add_u32 s12, s12, {MV}
s_add_u32 s13, s49, {XR}
s_lshl_b32 s14, s53, 11
s_add_u32 s14, s14, {STATS}
s_mul_i32 s61, s3, 40
s_add_u32 s61, s61, {OST}""")
a_(f"""s_cmp_eq_u32 s{sCG}, 6
s_cselect_b32 s16, 8, 12
s_cselect_b32 s17, 16, 24
s_lshl_b32 s18, s{sRB3}, 11
s_lshl_b32 s23, s{sCG}, 8
s_add_u32 s18, s18, s23
s_lshl_b32 s23, s3, 6
s_add_u32 s18, s18, s23
s_add_u32 s18, s18, {CROW}
v_accvgpr_write_b32 a232, -1
v_accvgpr_write_b32 a233, -1
v_accvgpr_write_b32 a234, -1
v_accvgpr_write_b32 a235, -1""")
A += st3_addr()[:51]
sprinkle(A, xl(0) + xl(1), P["x0"]/100, P["x1"]/100)
TS("addr")
CSTM = 28672
TAGC = f"s_mul_i32 s{sTAG}, s{sE}, 0x9E3779B1\ns_add_u32 s{sTAG}, s{sTAG}, 0x85EBCA6B\nv_and_b32 v31, 3, v1\nv_lshlrev_b32 v30, 3, v31\nv_lshrrev_b32 v19, v30, s{sTAG}\nv_and_b32 v19, 0xff, v19\n" + "\n".join(f"v_mov_b32 v{240+k}, s{sTAG}" for k in range(4))
def silu4():
    g("v_lshlrev_b32 v44, 16, v40\nv_and_b32 v45, 0xffff0000, v40\nv_lshlrev_b32 v46, 16, v41\nv_and_b32 v47, 0xffff0000, v41")
    for k in range(4): g(f"v_mul_f32 v{48+k}, 0xbfb8aa3b, v{44+k}")
    for k in range(4): g(f"v_exp_f32 v{48+k}, v{48+k}")
    for k in range(4): g(f"v_add_f32 v{48+k}, 1.0, v{48+k}")
    for k in range(4): g(f"v_rcp_f32 v{48+k}, v{48+k}")
    for k in range(4): g(f"v_mul_f32 v{44+k}, v{44+k}, v{48+k}")
    g("v_cvt_pk_bf16_f32 v40, v44, v45\nv_cvt_pk_bf16_f32 v41, v46, v47")
def swz_tr(dst):
    g(f"""v_bfe_u32 v32, v1, 2, 2
v_lshrrev_b32 v33, 1, v32
v_and_b32 v34, 1, v3
v_lshl_or_b32 v33, v34, 1, v33
v_xor_b32 v33, s3, v33
v_and_b32 v34, 3, v1
v_lshlrev_b32 v34, 3, v34
v_lshl_add_u32 v33, v33, 5, v34
v_lshl_add_u32 v32, v3, 3, v32
v_lshl_add_u32 v{dst}, v32, 7, v33""")
g("s_cmp_lt_u32 s2, 160\ns_cbranch_scc1 L_procW")
swz_tr(20)
g(f"""s_lshl_b32 s55, s3, 9
s_add_u32 s55, s55, {CSTM}
v_add_u32 v28, s55, v28
v_lshl_add_u32 v21, v3, 4, s55
v_lshlrev_b32 v23, 2, v1
s_cmp_lt_u32 s2, 220
s_cselect_b32 s55, 16, 0
v_cmp_gt_u32 vcc, s55, v1
s_mov_b32 s54, 0xffffff00
s_waitcnt vmcnt(18)
v_cndmask_b32 v23, v255, v23, vcc""")
silu4()
g("ds_write_b64 v28, v[40:41]\ns_waitcnt lgkmcnt(0)")
for ks in range(7): g(f"ds_read_b128 {vr(200+4*ks,4)}, v21 offset:{64*ks}")
g(f"s_waitcnt vmcnt(10)\nv_readfirstlane_b32 s{sE}, v42")
TS("Wland")
g("s_barrier")
g.lgq[:] = ["z"]
for ks in range(7):
    for hh in range(2): g.lg(f"ds_read_b64_tr_b16 {vr(60+4*ks+2*hh,2)}, v20 offset:{4096*ks+512*hh}", f"m{ks}")
g(TAGC)
for ks in range(7):
    g.wait(lg=f"m{ks}")
    g(f"v_mfma_f32_16x16x32_bf16 v[56:59], {vr(200+4*ks,4)}, {vr(60+4*ks,4)}, {'v[56:59]' if ks else 0}")
g(f"v_and_or_b32 v56, v56, s54, v19\nbuffer_store_dword v56, v23, {srd(sWS)}, s22 offen sc1")
for e in range(3): g(f"buffer_store_dword v56, v23, {srd(sPZ)}, 0 offen")
g("s_branch L_procj\nL_procW:")
assert len(g.vmq) - 1 - g.vmq.index("E") == 10
g.wait(vm=["W", "E"])
g(f"v_readfirstlane_b32 s{sE}, v42")
TS("Wland")
g("s_waitcnt lgkmcnt(0)\ns_barrier")
for e in range(4):
    for hh in range(2): g.lg(f"ds_read_b64_tr_b16 {vr(44+4*e+2*hh,2)}, v20 offset:{WST+40*e+7680*hh}", f"t{e}")
g(TAGC)
for e in range(4):
    g.wait(lg=f"t{e}")
    g.vm(f"buffer_store_dwordx4 {vr(44+4*e,4)}, v22, {srd(sPZ)}, s51 offen offset:{1024*e} sc1", "ws")
g("L_procj:")
TS("wsiss")

def ln(i):
    o = [('wait', f"x{i}", None)]
    def a(t): o.extend(x.strip() for x in t.split("\n"))
    T = 100 + i*20
    a("s_mov_b32 s55, 0x3f803f80\nv_mov_b32 v20, 0\nv_mov_b32 v21, 0")
    for d in range(20): a(f"v_dot2c_f32_bf16 v20, s55, v{T+d}\nv_dot2c_f32_bf16 v21, v{T+d}, v{T+d}")
    a(f"v_and_b32 v25, 0xffff0000, v{T}\nv_and_b32 v27, 0xffff0000, v{T+1}")
    for r in (8, 4, 2, 1):
        a(f"v_add_f32_dpp v20, v20, v20 row_ror:{r} {DPP}\nv_add_f32_dpp v21, v21, v21 row_ror:{r} {DPP}")
        if r > 1: a(f"v_lshlrev_b32 v{24+ (8,4,2).index(r)*2}, 16, v{T+(8,4,2).index(r)}")
    a(f"""v_mul_f32 v20, 0x3acccccd, v20
v_mul_f32 v21, 0x3acccccd, v21
v_fma_f32 v21, -v20, v20, v21
v_max_f32 v21, 0, v21
v_add_f32 v21, 0x3727c5ac, v21
v_rsq_f32 v22, v21
v_and_b32 v29, 0xffff0000, v{T+2}
v_mul_f32 v23, -v20, v22""")
    for d in range(20):
        t = 24 + 2*(d % 4)
        if d >= 3: a(f"v_lshlrev_b32 v{t}, 16, v{T+d}\nv_and_b32 v{t+1}, 0xffff0000, v{T+d}")
        a(f"v_pk_fma_f32 v[{t}:{t+1}], v[{t}:{t+1}], v[22:23], v[22:23] op_sel:[0,0,1] op_sel_hi:[1,0,1]")
        if d >= 1: a(f"v_cvt_pk_f16_f32 v{T+d-1}, v{24+2*((d-1)%4)}, v{25+2*((d-1)%4)}")
    a(f"v_cvt_pk_f16_f32 v{T+19}, v30, v31")
    return o

def gather_loads():
    o = [[('vm', f"buffer_load_dword v71, v247, {srd(sWS)}, s60 offen sc1", "ga")]]
    for st in range(2):
        for p in range(3):
            o.append([('vm', f"buffer_load_dwordx4 {vr(40+12*st+4*p,4)}, v{248+st}, {srd(sWS)}, s{56+p} offen sc1", "ga")])
    return o
def gather_check():
    for st in range(2):
        for p in range(3):
            b = 40 + 12*st + 4*p
            g(f"v_perm_b32 v64, v{b+1}, v{b}, s{sPA}\nv_perm_b32 v65, v{b+3}, v{b+2}, s{sPB}\nv_bitop3_b32 v{66+p}, v64, v65, s{sTAG} bitop3:0x56")
        g(f"v_or3_b32 v{69+st}, v66, v67, v68")
    g(f"v_and_b32 v70, v70, v250\nv_xor_b32 v71, s{sTAG}, v71\nv_or3_b32 v69, v69, v70, v71\nv_cmp_ne_u32 vcc, 0, v69")

emit(xl(2)[:0])
sprinkle(ln(0), xl(2), 0.0, 0.6); TS("ln0")
L1 = ln(1); k = len(L1)*P["flpos"]//100
for it in L1[:k]: g.item(it)
g.wait(vm="ws")
g.vm(f"buffer_store_dwordx4 v[240:243], v246, {srd(sPZ)}, s53 offen sc1", "fl")
TS("p1done")
sprinkle(L1[k:], xl(3), 0.0, 1.0); TS("ln1")
sprinkle(ln(2), xl(4), 0.02, 0.6); TS("ln2")
sprinkle(ln(3), gather_loads(), 0.02, 0.3)
g(S3)
TS("ln3done")
g.wait(vm="ga")
gather_check()
g("s_cbranch_vccnz L_ga_retry\nL_ga_ok:")
save = g.l; g.l = []
g("L_ga_retry:")
for gr in gather_loads(): g(gr[0][1])
g("s_waitcnt vmcnt(0)"); gather_check(); spin("L_ga_retry", "L_ga_ok"); g("s_branch L_ga_ok")
ool.append(g.l); g.l = save
g("s_barrier")
TS("gathered")
if P["nold"] & 1: g("v_mov_b32 v5, v255\nv_mov_b32 v6, v255")
if P["nold"] & 2: g("v_mov_b32 v232, v255\nv_mov_b32 v233, v255\nv_mov_b32 v234, v255")
wq = []
WF = " sc1" if P["wsc1"] else ""
for ks in range(20):
    b = 40 + (ks % 12)*16
    for t in range(4):
        wq.append([('vm', f"buffer_load_dwordx4 {ar(b+4*t,4)}, v{6 if t==3 else 5}, {srd(sWS)}, s59 offen offset:{256*t}{WF}", f"w{ks}")] + ([('s', "s_add_u32 s59, s59, 16384")] if t == 3 else []))
A = []
a_("s_mov_b32 s55, 0xffffff00")
for st in range(2):
    b = 40 + 12*st
    for k in range(12): a_(f"v_and_b32 v{b+k}, s55, v{b+k}")
    for p in (1, 2):
        for h in (0, 2): a_(f"v_pk_add_f32 v[{b+h}:{b+h+1}], v[{b+h}:{b+h+1}], v[{b+4*p+h}:{b+4*p+h+1}]")
    for rep in range(2):
        a_(f"v_cvt_pk_bf16_f32 v{b+4}, v{b}, v{b+1}\nv_cvt_pk_bf16_f32 v{b+5}, v{b+2}, v{b+3}")
        a_(f"v_lshlrev_b32 v{b}, 16, v{b+4}\nv_and_b32 v{b+1}, 0xffff0000, v{b+4}\nv_lshlrev_b32 v{b+2}, 16, v{b+5}\nv_and_b32 v{b+3}, 0xffff0000, v{b+5}")
        if rep == 0:
            for h in (0, 2): a_(f"v_pk_add_f32 v[{b+h}:{b+h+1}], v[{b+h}:{b+h+1}], v[252:253] op_sel_hi:[1,0]")
    if st == 0: A.append(('lg', f"ds_write_b128 v251, {vr(b,4)}", "gsw"))
    else: A.append(('lg', f"s_mov_b64 exec, 0xffff\nds_write_b128 v251, {vr(b,4)} offset:1024\ns_mov_b64 exec, -1", "gsw"))
nlead = 4*P["lead"]
sprinkle(A + ln(4), [wq.pop(0) for _ in range(nlead)], 0.0, 0.95)
TS("ln4")
g("s_waitcnt lgkmcnt(0)"); g.lgq[:] = []; g("s_barrier")
TS("bar3b")
def gs_reads(c):
    return [('lg', f"ds_read_b128 {vr(200+4*k,4)}, v10 offset:{c*512 + (2560 if k < 2 else 0) + 16*(k&1)}", "gs") for k in range(4)]
def modul(c):
    out = []
    for i in range(5):
        T = 100 + (i*5+c)*4; o = 220 + 4*(i & 1)
        for d in range(4):
            f = 216 + 2*(d & 1)
            out += [f"v_fma_mix_f32 v{f}, v{T+d}, v{200+2*d}, v{208+2*d} op_sel:[0,0,0] op_sel_hi:[1,0,0]",
                    f"v_fma_mix_f32 v{f+1}, v{T+d}, v{201+2*d}, v{209+2*d} op_sel:[1,0,0] op_sel_hi:[1,0,0]",
                    f"v_cvt_pk_bf16_f32 v{o+d}, v{f}, v{f+1}"]
            w = 4//(P["wsplit"] if c else 1)
            if (d+1) % w == 0:
                out.append(('lg', f"ds_write_b{32*w} v{(7,7,253,254,254)[i]}, {vr(o+d+1-w,w)} offset:{(c%3)*20480+i*1024+4*(d+1-w)}", f"hw{c}"))
    return out
def a_reads(ks):
    return [('lg', f"ds_read_b128 {ar((ks&1)*20+4*i,4)}, v{((8,9),(4,251))[ks>=12][ks&1]} offset:{(ks%12)*5120+i*1024}", f"a{ks}") for i in range(5)]
for it in gs_reads(0): g.item(it)
g.wait(lg="gs")
for it in modul(0): g.item(it)
TS("mod0")
for it in gs_reads(1): g.item(it)
g.wait(lg="hw0"); g("s_barrier")
for it in a_reads(0): g.item(it)
TS("mfma0")

acc = lambda t, i: 20 + (i*4+t)*4
AK, BQ, VV, VT, CC, CP, MP, SEL, ONE = 100, 120, 140, 152, 164, 168, 172, 174, 176
NEG = f2u(-1e30)
def attn_consts():
    o = [f"v_mov_b32 v180, {NEG}", "v_lshlrev_b32 v181, 2, v3", "v_sub_u32 v181, v2, v181"]
    for r in range(4):
        o += [f"v_subrev_u32 v182, {r}, v181", f"v_cmp_gt_u32 vcc, 8, v182", f"v_cmp_gt_i32 s[62:63], -8, v182", f"v_mov_b32 v{ONE+r}, 0x3f803f80",
              f"v_cndmask_b32 v{CC+r}, v180, 0, vcc", f"v_cndmask_b32 v{CP+r}, v180, 0, s[62:63]", f"v_cndmask_b32 v{184+r}, 0, -1, s[62:63]"]
    o += ["v_mov_b32 v182, 0xffff", f"v_bfi_b32 v{MP}, v182, v184, v185", f"v_bfi_b32 v{MP+1}, v182, v186, v187"]
    o += ["v_and_b32 v181, 1, v1", "v_lshlrev_b32 v181, 4, v181", "v_mov_b32 v182, 0x3f80", "v_lshlrev_b32 v182, v181, v182",
          "v_and_b32 v181, 0x32, v1", "v_cmp_eq_u32 vcc, 0x30, v181", "v_cmp_eq_u32 s[62:63], 50, v181", f"v_mov_b32 v{VV}, 0",
          f"v_cndmask_b32 v{SEL}, 0, v182, vcc", f"v_cndmask_b32 v{SEL+1}, 0, v182, s[62:63]",
          f"v_mov_b32 v{VV+1}, 0", f"v_mov_b32 v{VT}, 0", f"v_mov_b32 v{VT+1}, 0"]
    for i in range(5): o += [f"v_mov_b32 v{BQ+4*i+2}, 0", f"v_mov_b32 v{BQ+4*i+3}, 0"]
    o += ["v_mul_u32_u24 v229, 176, v2", "v_add_u32 v229, s61, v229", "v_lshl_add_u32 v228, v3, 3, v229"]
    return o
def wo_dma(n):
    out = []
    for k in range(3):
        out.append(([('s', f"s_add_u32 m0, s49, {n*12288}")] if k == 0 else []) +
                   [('vm', f"buffer_load_dwordx4 v{232+k}, {srd(sWO)}, s48 offen offset:{1024*k} lds", "wo")] +
                   ([('s', "s_add_u32 s48, s48, 81920")] if k == 2 else []))
    return out
xq = []
pz0 = P["pz0"]
for n in range(4): xq.append((pz0+n, [('vm', f"buffer_store_dwordx4 a[232:235], v{11+n}, {srd(sWS)}, s{sOB} offen sc1", "pz")]))
xq.append((pz0+4, [('vm', f"buffer_store_dwordx4 a[232:235], v246, {srd(sWS)}, s18 offen sc1", "pz")]))
xq.append((15, [('vm', f"buffer_store_dwordx4 v[240:243], v246, {srd(sWS)}, s100 offen sc1", "pf2")]))
for n, k0 in enumerate((0, 0, 0, 0, 3, 3, 7, 11, 11, 15)):
    xq += [(max(k0, P["wo0"]), gr) for gr in wo_dma(n)]
for k in range(3):
    xq.append((15, ([('s', f"s_add_u32 m0, s49, {XR}")] if k == 0 else []) + [('vm', f"buffer_load_dwordx4 v{235+k}, {srd(sX)}, s50 offen offset:{1024*k} lds", "xr")]))
MVL = [f"buffer_load_dwordx2 v[194:195], v248, {srd(sWS)}, s23 offen sc1", f"buffer_load_dwordx4 v[240:243], v238, {srd(sWS)}, s51 offen sc1",
       f"buffer_load_dwordx4 v[190:193], v238, {srd(sWS)}, s22 offen sc1", f"buffer_load_dwordx2 v[244:245], v239, {srd(sWR)}, s52 offen"]
xq += [(20, [('vm', t, "mv")]) for t in MVL]
if P["stpre"]: xq.append((20, [('vm', f"buffer_load_dword v196, v197, {srd(sWS)}, s14 offen sc1", "mv")]))
carry = [(0, it) for it in modul(1)]
for c in (2, 3, 4):
    m0 = (c-1)*P["mpace"]
    carry += [(0, it) for it in gs_reads(c)]
    if c == 2: carry += [(0, it) for it in st3_addr()[51:] + ["v_add_u32 v4, 61440, v8", "v_add_u32 v251, 61440, v9"]]
    if c == 3: carry += [(0, f"v_add_u32 v{r}, 61440, v{r}") for r in (7, 253, 254)]
    carry += [(0, ("gapwait", 4)), (m0, ('wait', None, "gs"))] + [(m0, it) for it in modul(c)]
B0, B1, B2, B3, L16, MVR, XRB, XRL, L4 = 7, 10, 253, 254, 252, 247, 230, 231, 0
st3b = f"""v_bfe_u32 v200, v1, 2, 2
v_lshl_add_u32 v200, v3, 3, v200
v_mul_u32_u24 v200, 192, v200
v_and_b32 v201, 3, v1
v_lshl_add_u32 v200, v201, 3, v200
v_and_b32 v201, 1, v3
v_lshl_add_u32 v{B0}, v201, 5, v200
v_xor_b32 v201, 1, v201
v_lshl_add_u32 v{B1}, v201, 5, v200
v_add_u32 v{B2}, 61440, v{B0}
v_add_u32 v{B3}, 61440, v{B1}
v_lshlrev_b32 v{L16}, 4, v1
v_lshl_add_u32 v{MVR}, v3, 4, s12
v_mul_u32_u24 v200, 192, v2
v_lshl_add_u32 v200, v3, 3, v200
v_add_u32 v{XRB}, s13, v200
v_add_u32 v{XRL}, s13, v{L16}
v_lshlrev_b32 v{L4}, 2, v1
v_add_u32 v198, s12, v{L16}
v_min_u32 v197, 13, v1
v_lshlrev_b32 v197, 7, v197""".split("\n")
carry += [(0, it) for it in attn_consts() + st3b]
def kwait(ks):
    ph = ks & 3
    o = [('wait', [f"w{ks}"] + (["pz"] if ks == 15 else []), [f"a{ks}", f"hw{(ks+1)//4}"] + (["gs"] if ks == 0 else []))]
    if ph == 3: o.append(('s', "s_barrier"))
    return o
for it in kwait(0): g.item(it)
loop0 = len(g.l)
credit = 0
for ks in range(20):
    c = ks >> 2; ph = ks & 3
    wb = 40 + (ks % 12)*16; ab = (ks & 1)*20
    mf = []
    for i in range(5):
        for t in range(4):
            A, B = (ar(ab+4*i, 4), ar(wb+4*t, 4)) if t == 2 else (ar(wb+4*t, 4), ar(ab+4*i, 4))
            d = vr(acc(t, i), 4)
            mf.append(f"v_mfma_f32_16x16x32_bf16 {d}, {A}, {B}, {d if ks else 0}")
    if ks == 19: break
    mem = {}
    for j, it in zip((0, 2, 3, 4, 6), a_reads(ks+1)): mem[j] = [it]
    credit += P["vpk"]
    slots = [1, 5, 9, 13, 17]
    pri = [e for e in xq if e[0] <= ks and e[1][-1][-1] in ("pz", "pf2")][:1]
    for j in slots:
        if credit < 10: break
        if pri and j == 9: e = pri.pop(); xq.remove(e); mem[j] = e[1]
        elif wq and int(wq[0][0][2][1:]) - ks < 12 and (int(wq[0][0][2][1:]) - ks <= P["maxlead"] or not [e for e in xq if e[0] <= ks and e not in pri]): mem[j] = wq.pop(0)
        else:
            c_ = [e for e in xq if e[0] <= ks and e[1][-1][-1] not in ("pz", "pf2")]
            if not c_: continue
            xq.remove(c_[0]); mem[j] = c_[0][1]
        credit -= 10
    credit = min(credit, 15)
    assert not wq or int(wq[0][0][2][1:]) > ks + 1
    va = list(carry)
    TS(f"k{ks}")
    carry = gaps(g, mf, mem, va, None, kwait(ks+1) if ks < 19 else None, P['wgap'], P['wdep'])
    if ph == 2: assert not [x for x in carry if x[1][-1] == f"hw{c+1}"], ks
    if ks == 10: assert not [x for x in carry if "v251" in x[1]]
    mk = P["mpace"]
    carry = [(max(0, m - 20), it) for m, it in carry]
assert not carry
assert not wq
if P["drop"]:
    pf = tuple(p for b, p in ((1, "buffer_load_dwordx4 a"), (2, "ds_write"), (4, "v_fma_mix"), (4, "v_cvt"), (8, "s_barrier"), (16, "ds_read"), (32, "s_waitcnt"), (64, "buffer_store_dwordx4 a")) if P["drop"] & b)
    g.l[loop0:] = [x for x in g.l[loop0:] if not x.startswith(pf)]
print("qkv slot overflow", g.over)
TS("qkvend")
dq = [e[1] for e in xq]
print('left for attention:', len(dq))
att = list(mf)
R5 = range(5)
cvt = lambda d, s: [f"v_cvt_pk_bf16_f32 v{d}, v{s}, v{s+1}", f"v_cvt_pk_bf16_f32 v{d+1}, v{s+2}, v{s+3}"]
MX = 180
SC = f2u(20**-0.5*math.log2(math.e))
g(f"s_mov_b32 s62, {SC}\ns_mov_b32 s63, {SC}")
for i in R5:
    att += cvt(AK+4*i+2, acc(3, i)) + cvt(AK+4*i, acc(1, i)) + cvt(BQ+4*i, acc(0, i))
    att += [f"v_permlane32_swap_b32 v{BQ+4*i+2}, v{AK+4*i+2}", f"v_permlane32_swap_b32 v{BQ+4*i+3}, v{AK+4*i+3}"] + cvt(VV+2+2*i, acc(2, i))
    att.append(f"v_mfma_f32_16x16x32_bf16 {vr(acc(1,i),4)}, {vr(AK+4*i,4)}, {vr(BQ+4*i,4)}, {vr(CC,4)}")
    if i: att.append(f"v_mfma_f32_16x16x32_bf16 {vr(acc(0,i),4)}, {vr(AK+4*i-4,4)}, {vr(BQ+4*i,4)}, {vr(CP,4)}")
    att.append(f"v_mfma_f32_16x16x16_bf16 {vr(acc(3,i),4)}, {vr(AK+4*i+2,2)}, {vr(SEL,2)}, 0")
    s = acc(1, i)
    if i: att += [f"v_max_f32 v{s+r}, v{s+r}, v{acc(0,i)+r}" for r in range(4)]
    att += [f"v_max3_f32 v{MX+i}, v{s}, v{s+1}, v{s+2}", f"v_max_f32 v{MX+i}, v{MX+i}, v{s+3}"]
    att += cvt(VT+2+2*i, acc(3, i))
att += [f"v_permlane32_swap_b32 v{MX}, v{MX+2}", f"v_permlane32_swap_b32 v{MX+1}, v{MX+3}", f"v_max_f32 v{MX}, v{MX}, v{MX+2}", f"v_max_f32 v{MX+1}, v{MX+1}, v{MX+3}",
        f"v_permlane16_swap_b32 v{MX}, v{MX+1}", f"v_max_f32 v{MX+1}, v{MX}, v{MX+1}", f"v_mul_f32 v{MX}, s62, v{MX+1}", f"v_mul_f32 v{MX+2}, s62, v{MX+1}",
        f"v_permlane32_swap_b32 v{MX}, v{MX+2}", f"v_mov_b32 v{MX+1}, v{MX}", f"v_mov_b32 v{MX+3}, v{MX+2}",
        f"v_permlane16_swap_b32 v{MX}, v{MX+1}", f"v_permlane16_swap_b32 v{MX+2}, v{MX+3}",
        f"v_mov_b32 v{MX+5}, v{MX+4}", f"v_permlane32_swap_b32 v{MX+4}, v{MX+5}", f"v_max_f32 v{MX+4}, v{MX+4}, v{MX+5}", f"v_mov_b32 v{MX+5}, v{MX+4}",
        f"v_permlane16_swap_b32 v{MX+4}, v{MX+5}", f"v_max_f32 v{MX+4}, v{MX+4}, v{MX+5}", f"v_mul_f32 v{MX+4}, s62, v{MX+4}"]
for i in R5:
    s = acc(1, i); p = acc(2, i); m = MX + (i & ~1); o = i & 1
    if P["attpk"] & 1: att += [f"v_pk_fma_f32 v[{s+h}:{s+h+1}], v[{s+h}:{s+h+1}], s[62:63], v[{m}:{m+1}] op_sel:[0,0,{o}] op_sel_hi:[1,0,{o}] neg_lo:[0,0,1] neg_hi:[0,0,1]" for h in (0, 2)]
    else: att += [f"v_fma_f32 v{s+r}, v{s+r}, s62, -v{MX+i}" for r in range(4)]
    att += [f"v_exp_f32 v{s+r}, v{s+r}" for r in range(4)]
    att += cvt(p+2, s)
    if i: att += [f"v_and_b32 v{p}, v{MP}, v{p+2}", f"v_and_b32 v{p+1}, v{MP+1}, v{p+3}", f"v_xor_b32 v{p+2}, v{p}, v{p+2}", f"v_xor_b32 v{p+3}, v{p+1}, v{p+3}"]
    if i:
        att += [f"v_mfma_f32_16x16x32_bf16 {vr(acc(3,i),4)}, {vr(ONE,4)}, {vr(p,4)}, 0", f"v_mfma_f32_16x16x32_bf16 {vr(acc(0,i),4)}, {vr(VV+2*i,4)}, {vr(p,4)}, 0",
                f"v_mfma_f32_16x16x32_bf16 {vr(acc(1,i),4)}, {vr(VT+2*i,4)}, {vr(p,4)}, 0"]
    else:
        att += [f"v_mfma_f32_16x16x16_bf16 {vr(acc(3,i),4)}, {vr(ONE,2)}, {vr(p+2,2)}, 0", f"v_mfma_f32_16x16x16_bf16 {vr(acc(0,i),4)}, {vr(VV+2,2)}, {vr(p+2,2)}, 0",
                f"v_mfma_f32_16x16x16_bf16 {vr(acc(1,i),4)}, {vr(VT+2,2)}, {vr(p+2,2)}, 0"]
    att.append(f"v_rcp_f32 v{acc(3,i)}, v{acc(3,i)}")
    for t in (0, 1):
        s = acc(t, i)
        if P["attpk"] & 2: att += [f"v_pk_mul_f32 v[{s+h}:{s+h+1}], v[{s+h}:{s+h+1}], {vr(acc(3,i),2)} op_sel_hi:[1,0]" for h in (0, 2)]
        else: att += [f"v_mul_f32 v{s+r}, v{s+r}, v{acc(3,i)}" for r in range(4)]
        att += cvt(s, s)
        att.append(('lg', f"ds_write_b64 v{229 if t else 228}, {vr(s,2)} offset:{i*16*176 + (32 if t else 0)}", "ow"))
att, est = listsched(att)
print("attention est cycles", est, "instrs", len(att))
step = P["astep"]; nxt = 0
for n, it in enumerate(att):
    if n % (len(att)//4) == 0: TS(f"att{n//(len(att)//4)}")
    ism = isinstance(it, str) and it.startswith("v_mfma")
    go = dq and n >= nxt and (ism or n >= nxt + 6)
    if go:
        gr = dq.pop(0); k = [kind(x) for x in gr].index("M")
        for x in gr[:k]: g.item(x)
    g.item(it)
    if go:
        for x in gr[k:]: g.item(x)
        nxt = n + (4 if n < 30 else step)
assert not dq
g.wait(lg="*"); g("s_barrier")
TS("bar5")
for n in range(4): g.lg(f"ds_read_b128 {vr(20+4*n,4)}, v{15+n}", f"or{n}")
g(f"""s_mul_i32 s56, s53, 20480
s_add_u32 s56, s56, {OPP}
s_add_u32 s57, s56, 4096
s_add_u32 s58, s56, 8192
s_add_u32 s59, s56, 12288
s_add_u32 s60, s56, 16384
s_mov_b32 s55, 0x05040100""")
for n in range(4):
    g.wait(lg=f"or{n}")
    g.vm(f"buffer_store_dwordx4 {vr(20+4*n,4)}, v{11+n}, {srd(sWS)}, s{sOB} offen sc1", "os")
TS("ostored")
g.wait(vm=["wo", "mv", "xr"])
g("s_barrier")
TS("bar6")
def btr(dst, ks, j, tag):
    base = ((B0, B1), (B2, B3))[ks >= 10][j & 1]
    return [('lg', f"ds_read_b64_tr_b16 {dst(2*hh)}, v{base} offset:{(ks%10)*6144 + hh*768 + (j & ~1)*32}", tag) for hh in range(2)]
oload = lambda ks: f"buffer_load_dwordx4 {vr(100+4*ks,4)}, v{L16}, {srd(sWS)}, s{56+ks//4} offen offset:{(ks%4)*1024} sc1"
def mv_check():
    for b in (240, 190):
        g(f"v_perm_b32 v36, v{b+1}, v{b}, s55\nv_perm_b32 v37, v{b+3}, v{b+2}, s55\nv_xor_b32 v36, s{sTAG}, v36\nv_xor_b32 v37, s{sTAG}, v37")
        g("v_or_b32 v38, v36, v37" if b == 240 else "v_or3_b32 v38, v38, v36, v37")
    g(f"v_and_b32 v38, v38, v250\nv_xor_b32 v37, s{sTAG}, v194\nv_or_b32 v38, v38, v37\nv_cmp_ne_u32 vcc, 0, v38")
for j in range(6): g.lg(f"ds_read_b64 {vr(20+2*j,2)}, v{XRB} offset:{32*j}", "xr")
mv_check()
g("s_cbranch_vccnz L_mv_retry\nL_mv_ok:")
save = g.l; g.l = []
g("L_mv_retry:\n" + "\n".join(MVL[:3]) + "\ns_waitcnt vmcnt(0)"); mv_check(); spin("L_mv_retry", "L_mv_ok"); g("s_branch L_mv_ok")
ool.append(g.l); g.l = save
TS("mvok")
g("v_cmp_ne_u32 vcc, s19, v195")
for b in (240, 190):
    for k in range(4): g(f"v_and_b32 v{b+k}, 0xffff0000, v{b+k}")
g(f"""s_lshr_b32 s15, vcc_lo, 16
v_lshlrev_b32 v40, 16, v244
v_and_b32 v41, 0xffff0000, v244
v_lshlrev_b32 v42, 16, v245
v_and_b32 v43, 0xffff0000, v245
v_pk_mul_f32 v[40:41], v[40:41], v[190:191]
v_pk_mul_f32 v[42:43], v[42:43], v[192:193]
s_mov_b32 exec_hi, 0xffff""")
g.lg("ds_write_b128 v198, v[240:243]", "mw"); g.lg("ds_write_b128 v198, v[190:193] offset:768", "mw"); g.lg("ds_write_b128 v198, v[40:43] offset:1536", "mw")
g("s_mov_b32 exec_hi, -1")
g.wait(lg="xr")
for k in range(12): g(f"v_lshlrev_b32 v{68+2*k}, 16, v{20+k}\nv_and_b32 v{69+2*k}, 0xffff0000, v{20+k}")
pl = []
for j in range(6): pl.append(('lg', f"ds_read_b128 {vr(204+4*j,4)}, v{MVR} offset:{4*384+64*j}", "cc"))
for j in range(6): pl.append(('lg', f"ds_read_b128 {vr(180+4*j,4)}, v{MVR} offset:{64*j}", "cc"))
for ks in range(20):
    for j in range(3): pl += btr(lambda o: ar((ks*3+j)*4+o, 2), ks, j, "bp")
for j in range(3): pl += btr(lambda o: vr(44+4*j+o, 2), 0, 3+j, "b0")
NO = P["no"]; od = P["odelay"]; oi = 0
for n, it in enumerate(pl):
    while oi < NO and n >= od + oi*P["ostep"]:
        g.vm(oload(oi), f"o{oi//2}"); oi += 1
        if oi == 1: TS("oiss")
    g.item(it)
while oi < NO:
    g.vm(oload(oi), f"o{oi//2}"); oi += 1
g.wait(lg="cc")
g("v_pk_add_f32 v[94:95], v[204:205], v[206:207]")
for k in range(2, 12): g(f"v_pk_add_f32 v[94:95], v[94:95], v[{204+2*k}:{205+2*k}]")
g("v_add_f32 v95, v94, v95")
TS("plend")
def ocheck(n):
    b = 100 + 8*n
    return [f"v_max3_u32 v92, v{b}, v{b+1}, v{b+2}", f"v_max3_u32 v93, v{b+3}, v{b+4}, v{b+5}", f"v_max3_u32 v92, v92, v{b+6}, v{b+7}", "v_max_u32 v92, v92, v93", "v_cmp_eq_u32 vcc, -1, v92"]
def obranch(n):
    global save
    save = g.l; g.l = []
    g(f"L_o{n}_retry:\n{oload(2*n)}\n{oload(2*n+1)}\ns_waitcnt vmcnt(0)\n" + "\n".join(ocheck(n))); spin(f"L_o{n}_retry", f"L_o{n}_ok"); g(f"s_branch L_o{n}_ok")
    ool.append(g.l); g.l = save
    return ('s', f"s_cbranch_vccnz L_o{n}_retry\nL_o{n}_ok:")
g.wait(vm="o0", lg="bp")
for t in ocheck(0): g(t)
TS("o0chk")
g.item(obranch(0))
for n in range(10):
    part = {2: ('wait', None, f"b{2*n}"), 8: ('wait', None, f"b{2*n+1}")}
    if n < 9:
        ch = [('wait', f"o{n+1}", None)] + ocheck(n+1) + [obranch(n+1)]
        for k, it in zip((3, 4, 5, 6, 7, 9, 11), ch): part[k] = it
    for k in (0, 1):
        if oi < 20: part[k] = ('vm', oload(oi), f"o{oi//2}"); oi += 1
    assert oi >= min(20, 2*n + 4)
    for h in range(2):
        ks = 2*n + h
        sb = 44 + 12*(ks & 1); nb = 44 + 12*((ks+1) & 1)
        its = []
        if ks < 19:
            for j in range(3): its += btr(lambda o: vr(nb+4*j+o, 2), ks+1, 3+j, f"b{ks+1}")
        for j in range(6):
            A = ar((ks*3+j)*4, 4) if j < 3 else vr(sb+4*(j-3), 4)
            d = vr(20+4*j, 4)
            g(f"v_mfma_f32_16x16x32_bf16 {d}, {A}, {vr(100+4*ks,4)}, {d if ks else 0}")
            if its: g.item(its[j])
            if 6*h + j in part: g.item(part[6*h + j])
    TS(f"o{n+1}")
TS("woend")
for v, b in ((2, 100), (1, 124), (3, 148)):
    for j in range(6): g.lg(f"ds_read_b128 {vr(b+4*j,4)}, v{MVR} offset:{v*384+64*j}", "m2")
pk = lambda b, k: f"v[{b+2*k}:{b+2*k+1}]"
for k in range(12): g(f"v_pk_fma_f32 {pk(20,k)}, {pk(20,k)}, {pk(180,k)}, {pk(68,k)}")
g(f"v_pk_mul_f32 v[46:47], {pk(20,0)}, {pk(20,0)}\nv_pk_mul_f32 v[48:49], {pk(20,0)}, {pk(204,0)}\nv_pk_add_f32 v[44:45], {pk(20,0)}, {pk(20,1)}")
for k in range(1, 12):
    g(f"v_pk_fma_f32 v[46:47], {pk(20,k)}, {pk(20,k)}, v[46:47]\nv_pk_fma_f32 v[48:49], {pk(20,k)}, {pk(204,k)}, v[48:49]")
    if k > 1: g(f"v_pk_add_f32 v[44:45], v[44:45], {pk(20,k)}")
g(f"""v_add_f32 v44, v44, v45
v_add_f32 v46, v46, v47
v_add_f32 v48, v48, v49
s_mov_b32 s56, s14
s_lshl_b32 s57, s{sCG}, 8
s_add_u32 s57, s57, s56
v_permlane32_swap_b32 v44, v46
v_permlane32_swap_b32 v48, v95
v_add_f32 v44, v44, v46
v_add_f32 v48, v48, v95
s_mov_b32 s55, 0xffffff00
v_permlane16_swap_b32 v44, v48
v_add_f32 v44, v44, v48
s_cmp_eq_u32 s15, {0 if P['fast'] else 0x10000}
v_and_or_b32 v44, v44, s55, v19
s_cbranch_scc0 L_st_slow
buffer_store_dword v44, v{L4}, {srd(sWS)}, s57 offen
L_st_j:""")
ool.append(["L_st_slow:", f"buffer_store_dword v44, v{L4}, {srd(sWS)}, s57 offen sc1", "s_branch L_st_j"])
TS("stpub")
for _ in range(P["adelay"]): g("s_sleep 1")
g("L_st_poll:")
for k in range(7): g(f"buffer_load_dword v{44+k}, v{L4}, {srd(sWS)}, s56 offen offset:{256*k} sc1")
g("s_waitcnt vmcnt(0)"); g.vmq[:] = []
g("v_xor_b32 v52, v44, v19")
for k in range(1, 7): g(f"v_bitop3_b32 v52, v52, v{44+k}, v19 bitop3:0xf6")
g("v_and_b32 v52, 0xff, v52\nv_cmp_ne_u32 vcc, 0, v52")
spin("L_st_poll", "L_st_ok")
g("L_st_ok:")
TS("stok")
for k in range(7): g(f"v_and_b32 v{44+k}, s55, v{44+k}")
g(f"""v_add_f32 v44, v44, v45
v_add_f32 v46, v46, v47
v_add_f32 v48, v48, v49
v_add_f32 v44, v44, v50
v_add_f32 v46, v46, v48
v_add_f32 v44, v44, v46
v_mov_b32 v46, v44
v_permlane32_swap_b32 v44, v46
v_mov_b32 v45, v44
v_mov_b32 v47, v46
v_permlane16_swap_b32 v44, v45
v_permlane16_swap_b32 v46, v47
v_mul_f32 v44, 0x3acccccd, v44
v_mul_f32 v46, 0x3acccccd, v46
v_fma_f32 v46, -v44, v44, v46
v_max_f32 v46, 0, v46
v_add_f32 v46, 0x3727c5ac, v46
v_rsq_f32 v48, v46
v_fma_f32 v45, -v44, v47, v45
v_mul_f32 v45, v45, v48
v_mul_f32 v49, -v44, v48
s_lshl_b32 s57, s3, 2
s_add_u32 s57, s57, {AM}
v_max_f32_dpp v46, v45, v45 row_ror:8 {DPP}
v_mov_b32 v50, s57
v_and_b32 v51, 12, v{L4}
v_max_f32_dpp v46, v46, v46 row_ror:4 {DPP}
v_add_u32 v51, {AM}, v51
v_max_f32_dpp v46, v46, v46 row_ror:2 {DPP}
v_max_f32_dpp v46, v46, v46 row_ror:1 {DPP}""")
g.lg("ds_write_b32 v50, v46", "am")
TS("amw")
for k in range(12): g(f"v_pk_fma_f32 {pk(68,k)}, {pk(20,k)}, v[48:49], v[48:49] op_sel:[0,0,1] op_sel_hi:[1,0,1]")
g.wait(lg="*"); g("s_barrier")
TS("amb")
g.lg("ds_read_b32 v52, v51", "am")
for k in range(12): g(f"v_pk_fma_f32 {pk(68,k)}, {pk(68,k)}, {pk(100,k)}, {pk(124,k)}")
g.wait(lg="*")
g(f"""v_max_f32_dpp v53, v52, v52 quad_perm:[1,0,3,2] {DPP}
v_max_f32_dpp v53, v53, v53 quad_perm:[2,3,0,1] {DPP}
v_cmp_eq_f32 vcc, v53, v52
v_cmp_eq_f32 s[58:59], v53, v45
s_ff1_i32_b64 s57, vcc
s_and_b32 s57, s57, 3
s_cmp_eq_u32 s57, s3
s_cbranch_scc0 L_nowin
s_ff1_i32_b64 s57, s[58:59]
s_and_b32 s57, s57, 15
s_cmp_eq_u32 s{sCG}, 0
s_cbranch_scc0 L_nocand
s_lshl_b32 s58, s57, 1
s_add_u32 s58, s58, s54
v_mov_b32 v56, v53
v_mov_b32 v57, s58
v_mov_b32 v58, s{sTAG}
v_mov_b32 v59, s53
s_lshl_b32 s58, s{sRB3}, 7
s_add_u32 s58, s58, {CAND}
s_mov_b64 exec, 0xff
buffer_store_dwordx4 v[56:59], v{L16}, {srd(sWS)}, s58 offen sc1
L_nocand:
s_mov_b32 s58, 0x00010001
s_lshl_b32 exec_lo, s58, s57
s_lshl_b32 exec_hi, s58, s57
s_lshl_b32 s58, s{sRB3}, 11
s_lshl_b32 s59, s{sCG}, 8
s_add_u32 s58, s58, s59
s_lshl_b32 s59, s58, 1
s_add_u32 s58, s58, {CROW}
s_add_u32 s59, s59, {CBASE}
v_lshlrev_b32 v54, 3, v3
v_lshlrev_b32 v55, 4, v3""")
for j in range(6):
    g(f"v_cvt_pk_bf16_f32 v{172+2*(j%4)}, v{68+4*j}, v{69+4*j}\nv_cvt_pk_bf16_f32 v{173+2*(j%4)}, v{70+4*j}, v{71+4*j}")
    g(f"buffer_store_dwordx2 {vr(172+2*(j%4),2)}, v54, {srd(sWS)}, s58 offen offset:{32*j} sc1")
g(f"s_and_b32 s60, s{sTAG}, 0xff\ns_bfe_u32 s61, s{sTAG}, 0x80008\ns_bfe_u32 s62, s{sTAG}, 0x80010\ns_lshr_b32 s63, s{sTAG}, 24\nv_mov_b32 v60, s55")
for j in range(6):
    for h in range(2): g(f"v_pk_fma_f32 {pk(100,2*j+h)}, {pk(68,2*j+h)}, {pk(148,2*j+h)}, {pk(20,2*j+h)}")
    for r in range(4): g(f"v_and_or_b32 v{100+4*j+r}, v{100+4*j+r}, v60, s{60+r}")
    g(f"buffer_store_dwordx4 {vr(100+4*j,4)}, v55, {srd(sWS)}, s59 offen offset:{64*j} sc1")
g("s_mov_b64 exec, -1\nL_nowin:")
TS("candpub")
for j in range(6):
    for h in range(2): g(f"v_pk_fma_f32 {pk(20,2*j+h)}, {pk(68,2*j+h)}, {pk(148,2*j+h)}, {pk(20,2*j+h)}")
    g(f"v_cvt_pk_bf16_f32 v{20+4*j}, v{20+4*j}, v{21+4*j}\nv_cvt_pk_bf16_f32 v{21+4*j}, v{22+4*j}, v{23+4*j}")
    g.lg(f"ds_write_b64 v{XRB}, {vr(20+4*j,2)} offset:{32*j}", "ow")
g.wait(lg="*")
for k in range(3): g.lg(f"ds_read_b128 {vr(44+4*k,4)}, v{XRL} offset:{1024*k}", f"r{k}")
for k in range(3):
    g.wait(lg=f"r{k}")
    g(f"buffer_store_dwordx4 {vr(44+4*k,4)}, v{235+k}, {srd(sOUT)}, s50 offen offset:{1024*k} sc1")
g(f"""s_lshl_b32 s56, s53, 3
s_add_u32 s56, s56, s{sCG}
s_lshl_b32 s56, s56, 4
s_add_u32 s56, s56, {OUTD}
v_mov_b32 v20, s{sTAG}
s_mov_b64 exec, 1
s_waitcnt vmcnt(0)
buffer_store_dword v20, v{L4}, {srd(sWS)}, s56 offen sc1
s_mov_b64 exec, -1""")
TS("mainend")
g("s_branch L_fin")
for b in ool: g.l += b
ool[:] = []

sWG, sWU, sWD = sX, sWQ, sPZ
CST = 100000 - 160
g(f"""L_svc:
s_sub_u32 s44, s2, 224
v_lshlrev_b32 v28, 3, v0
s_waitcnt lgkmcnt(0)
s_mov_b32 s{sWM}, s22
s_mov_b32 s{sWM+1}, s23
s_mov_b32 s{sC+2}, 1280
s_mov_b32 s{sC+3}, 0x20000
buffer_load_dwordx2 v[40:41], v28, {srd(sC)}, 0 offen
buffer_load_dword v42, v29, {srd(sWS)}, 0 offen sc1
s_load_dwordx2 s[{sWG}:{sWG+1}], s[0:1], 40
s_load_dwordx2 s[{sWU}:{sWU+1}], s[0:1], 48
s_load_dwordx2 s[{sWD}:{sWD+1}], s[0:1], 56
s_load_dwordx2 s[{sWO}:{sWO+1}], s[0:1], 16
s_load_dwordx2 s[{sWR}:{sWR+1}], s[0:1], 32
s_load_dwordx2 s[{sOUT}:{sOUT+1}], s[0:1], 80""")
for sr, sz in ((sWM, 4915200), (sWO, 819200), (sWR, 1280), (sOUT, 2621440), (sWG, 2211840), (sWU, 2211840), (sWD, 2211840)): g(f"s_mov_b32 s{sr+2}, {sz}\ns_mov_b32 s{sr+3}, 0x20000")
swz_tr(6)
g(f"""s_mov_b32 s{sSPIN}, 0
s_mov_b32 s{sPA}, 0x0c0c0400
s_mov_b32 s{sPB}, 0x04000c0c
v_add_u32 v7, 40960, v6
v_add_u32 v9, 81920, v6
v_add_u32 v10, 81920+40960, v6
s_mul_i32 s55, s3, 320
s_add_u32 s55, s55, 81920
v_mul_u32_u24 v32, 1280, v32
v_add3_u32 v11, v32, v34, s55
s_and_b32 s55, s3, 1
s_lshl_b32 s55, s55, 2
v_and_b32 v30, 1, v3
v_lshl_or_b32 v30, v30, 1, s55
v_and_b32 v31, 7, v1
v_xor_b32 v31, v30, v31
v_lshlrev_b32 v31, 4, v31
v_lshrrev_b32 v30, 3, v1
v_mad_u32_u24 v4, v30, 60, 0
v_lshl_add_u32 v4, v4, 7, v31
v_mad_u32_u24 v5, v30, 27, 0
v_lshl_add_u32 v5, v5, 7, v31
v_lshlrev_b32 v8, 4, v1
v_lshlrev_b32 v12, 2, v1
v_mov_b32 v255, {OOB}
s_waitcnt lgkmcnt(0)""")
def svc_silu(n):
    g(f"s_waitcnt vmcnt({n})\nv_readfirstlane_b32 s{sE}, v42")
    silu4()
    g(f"v_add_u32 v28, {CST}, v28\nds_write_b64 v28, v[40:41]\nv_lshlrev_b32 v28, 4, v3\nv_add_u32 v28, {CST}, v28")
    g(TAGC)
    g(f"v_and_b32 v30, 1, v1\nv_lshlrev_b32 v30, 4, v30\nv_lshrrev_b32 v13, v30, s{sTAG}\nv_and_b32 v13, 0xffff, v13\ns_waitcnt lgkmcnt(0)\ns_barrier")
    for ks in range(20): g(f"ds_read_b128 {vr(100+4*ks,4)}, v28 offset:{64*ks}")
    g("s_waitcnt lgkmcnt(0)\ns_barrier")
g.vmq[:] = []; g.lgq[:] = []
def tile_dma(half, sr, voff, s_src, step, tag, flags="nt"):
    g(f"s_add_u32 m0, s49, {half*81920}")
    for n in range(20):
        g.vm(f"buffer_load_dwordx4 v{voff}, {srd(sr)}, s{s_src} offen {flags} lds", tag)
        if n < 19: g(f"s_add_u32 m0, m0, 4096\ns_add_u32 s{s_src}, s{s_src}, {4*step}")
def tile_tr(half, dst):
    for ks in range(20):
        for hh in range(2):
            g(f"ds_read_b64_tr_b16 {dst(4*ks+2*hh)}, v{(6,9)[half] + (ks >= 10)} offset:{(ks%10)*4096+hh*512}")
def mod_src(sunit):
    g(f"s_lshl_b32 s50, s{sunit}, 7\ns_mul_i32 s55, s3, {8*7680}\ns_add_u32 s50, s50, s55\ns_add_u32 s50, s50, 2560")
def mod_consume(half, sunit):
    tile_tr(half, lambda o: vr(20+o, 2))
    g("s_waitcnt lgkmcnt(0)\ns_barrier")
    for ks in range(20): g(f"v_mfma_f32_16x16x32_bf16 v[180:183], {vr(100+4*ks,4)}, {vr(20+4*ks,4)}, {'v[180:183]' if ks else 0}")
    g(f"""s_sub_u32 s55, s{sunit}, 20
s_cmp_lt_u32 s55, 10
s_cselect_b32 s55, 1.0, 0
s_lshl_b32 s56, s{sunit}, 8
s_lshl_b32 s57, s3, 6
s_add_u32 s56, s56, s57
s_add_u32 s56, s56, {MOD2}
v_cvt_pk_bf16_f32 v180, v180, v180
v_lshlrev_b32 v180, 16, v180
v_add_f32 v180, s55, v180
v_cvt_pk_bf16_f32 v180, v180, v180
v_lshl_or_b32 v180, v180, 16, v13
s_mov_b64 exec, 0xffff""")
    g.vm(f"buffer_store_dword v180, v12, {srd(sWS)}, s56 offen sc1", "m2s")
    g("s_mov_b64 exec, -1")
def cand_poll(L):
    g(f"""v_and_b32 v30, 31, v1
v_lshlrev_b32 v30, 7, v30
s_mov_b32 s55, {CAND}
{L}_cp:
buffer_load_dwordx4 v[20:23], v30, {srd(sWS)}, s55 offen sc1
s_waitcnt vmcnt(0)
v_cmp_ne_u32 vcc, s{sTAG}, v22""")
    spin(f"{L}_cp", f"{L}_cok")
    g(f"""{L}_cok:
v_max_f32_dpp v24, v20, v20 row_ror:8 {DPP}
v_max_f32_dpp v24, v24, v24 row_ror:4 {DPP}
v_max_f32_dpp v24, v24, v24 row_ror:2 {DPP}
v_max_f32_dpp v24, v24, v24 row_ror:1 {DPP}
v_mov_b32 v25, v24
v_permlane16_swap_b32 v24, v25
v_max_f32 v24, v24, v25
v_cmp_eq_f32 vcc, v24, v20
s_ff1_i32_b64 s45, vcc
s_and_b32 s45, s45, 31""")
g("s_cmp_ge_u32 s44, 27\ns_cbranch_scc1 L_fz")
g(f"s_lshl_b32 s55, s44, 2\ns_add_u32 s55, s55, s3\ns_mul_i32 s55, s55, {60*128}\nv_lshlrev_b32 v33, 7, v1\ns_mov_b32 exec_hi, 0xfffffff\nbuffer_load_dword v184, v33, {srd(sWO)}, s55 offen\ns_mov_b32 exec_hi, -1")
mod_src(44); tile_dma(0, sWM, 4, 50, 8*7680, "t0")
svc_silu(21)
g(f"s_lshl_b32 s51, s44, 7\ns_mul_i32 s55, s3, {8*3456}\ns_add_u32 s51, s51, s55\ns_mov_b32 s52, s51")
tile_dma(1, sWG, 5, 51, 8*3456, "t1")
g.wait(vm="t0"); g("s_barrier")
mod_consume(0, 44)
TS("t0", True)
tile_dma(0, sWU, 5, 52, 8*3456, "t2")
g.wait(vm="t1"); g("s_barrier")
tile_tr(1, lambda o: ar(o, 2)); g("s_waitcnt lgkmcnt(0)\ns_barrier")
g("s_mul_i32 s51, s44, 81920\ns_add_u32 s51, s51, s49")
tile_dma(1, sWD, 8, 51, 1024, "t3")
g.wait(vm="t2"); g("s_barrier")
tile_tr(0, lambda o: ar(80+o, 2))
g("s_waitcnt vmcnt(0) lgkmcnt(0)\ns_barrier"); g.vmq[:] = []
for t in range(10):
    for ks in range(2):
        for hh in range(2): g(f"ds_read_b64_tr_b16 {ar(160+(t*2+ks)*4+2*hh,2)}, v11 offset:{ks*40960+hh*5120+t*32}")
g(f"""s_waitcnt lgkmcnt(0)
v_mov_b32 v20, 0
ds_write_b32 v12, v20 offset:8192
v_mul_u32_u24 v30, 5462, v1
v_lshrrev_b32 v30, 16, v30
v_lshl_add_u32 v14, v30, 6, v8
v_add_u32 v31, 64, v1
v_mul_u32_u24 v30, 5462, v31
v_lshrrev_b32 v30, 16, v30
v_lshlrev_b32 v31, 4, v31
v_lshl_add_u32 v15, v30, 6, v31
v_cmp_gt_u32 vcc, 16, v1
s_lshl_b32 s55, s3, 11
v_add_u32 v16, s55, v8
v_cndmask_b32 v15, v255, v15, vcc
v_lshl_add_u32 v17, v3, 4, s55
s_lshl_b32 s55, s3, 5
v_lshl_add_u32 v18, v2, 1, s55
v_lshrrev_b32 v30, 2, v2
v_lshlrev_b32 v31, 4, v3
v_add_u32 v32, 128, v31""")
for q in range(4): g(f"v_cmp_eq_u32 vcc, {q}, v30\nv_cndmask_b32 v{232+q}, v32, v31, vcc")
g(f"""v_lshrrev_b32 v30, 5, v1
v_and_b32 v31, 31, v1
v_lshlrev_b32 v31, 2, v31
v_lshl_add_u32 v236, v30, 12, v31
v_cmp_gt_u32 vcc, 32, v1
s_mul_i32 s46, s3, {5*4096}
s_lshl_b32 s55, s44, 7
s_add_u32 s46, s46, s55
s_add_u32 s46, s46, {YP}
v_cndmask_b32 v237, v255, v236, vcc
s_add_u32 s47, s46, 8192
s_add_u32 s48, s46, 16384
s_mov_b32 s54, 0xffffff00
s_waitcnt lgkmcnt(0)
s_barrier""")
TS("ready", True)
cand_poll("L_m")
TS("cand", True)
g(f"""s_lshl_b32 s55, s45, 11
s_add_u32 s55, s55, {CROW}
L_m_rp:
buffer_load_dwordx4 v[20:23], v14, {srd(sWS)}, s55 offen sc1
buffer_load_dwordx4 v[24:27], v15, {srd(sWS)}, s55 offen sc1
s_waitcnt vmcnt(0)
ds_write_b128 v16, v[20:23]
ds_write_b128 v16, v[24:27] offset:1024
v_max3_u32 v28, v20, v21, v22
v_max3_u32 v29, v23, v24, v25
v_max3_u32 v28, v28, v26, v27
v_max_u32 v28, v28, v29
v_cmp_eq_u32 vcc, -1, v28""")
spin("L_m_rp", "L_m_rok")
g("L_m_rok:")
TS("row", True)
g.lgq[:] = []
for ks in range(6): g.lg(f"ds_read_b128 {vr(100+4*ks,4)}, v17 offset:{64*ks}", f"x{ks}")
mf = []; mem = {}; pre = {}
for ks in range(20):
    pre[2*ks] = [('wait', None, f"x{ks}")]
    mf += [f"v_mfma_f32_16x16x32_bf16 v[32:35], {vr(100+4*ks,4)}, {ar(4*ks,4)}, {'v[32:35]' if ks else 0}",
           f"v_mfma_f32_16x16x32_bf16 v[36:39], {vr(100+4*ks,4)}, {ar(80+4*ks,4)}, {'v[36:39]' if ks else 0}"]
    if ks + 6 < 20: mem[2*ks] = [('lg', f"ds_read_b128 {vr(100+4*(ks+6),4)}, v17 offset:{64*(ks+6)}", f"x{ks+6}")]
gaps(g, mf, mem, [], pre)
silu(32, 33)
g("v_mul_f32 v32, v32, v36\nv_cvt_pk_bf16_f32 v32, v32, v32\nds_write_b16 v18, v32 offset:8192\ns_waitcnt lgkmcnt(0)\ns_barrier")
g.lgq[:] = []
for q in range(4):
    for ks in range(2): g.lg(f"ds_read_b128 {vr(40+(q*2+ks)*4,4)}, v{232+q} offset:{8192+64*ks}", f"q{q}")
for t in range(10):
    if t < 4: g.wait(lg=f"q{t}")
    d = vr(20+4*(t//4), 4)
    for ks in range(2):
        g(f"v_mfma_f32_16x16x32_bf16 {d}, {vr(40+((t%4)*2+ks)*4,4)}, {ar(160+(t*2+ks)*4,4)}, {d if (t%4 or ks) else 0}")
for a in range(3):
    g(f"v_and_or_b32 v{20+4*a}, v{20+4*a}, s54, v19\nbuffer_store_dword v{20+4*a}, v{237 if a==2 else 236}, {srd(sWS)}, s{46+a} offen sc1")
TS("ypub", True)
g("s_branch L_fin")
g("L_fz:")
g.vmq[:] = []
g("s_add_u32 s46, s44, 5\ns_add_u32 s47, s44, 10")
mod_src(44); tile_dma(0, sWM, 4, 50, 8*7680, "u0")
svc_silu(20)
mod_src(46); tile_dma(1, sWM, 4, 50, 8*7680, "u1")
g.wait(vm="u0"); g("s_barrier")
mod_consume(0, 44)
g(f"s_cmp_lt_u32 s47, 40\ns_cselect_b32 s{sWM+2}, s{sWM+2}, 0")
mod_src(47); tile_dma(0, sWM, 4, 50, 8*7680, "u2")
g.wait(vm="u1"); g("s_barrier")
mod_consume(1, 46)
g("s_cmp_lt_u32 s47, 40\ns_cbranch_scc0 L_fz_u\ns_waitcnt vmcnt(1)\ns_barrier")
mod_consume(0, 47)
g(f"L_fz_u:\nbuffer_load_dword v191, v12, {srd(sOUT)}, 0 offen\ns_mov_b32 s55, 2621184\nbuffer_load_dword v192, v12, {srd(sOUT)}, s55 offen")
TS("t0", True)
g.vmq[:] = []
g(f"""s_sub_u32 s46, s44, 27
s_lshl_b32 s46, s46, 2
s_add_u32 s46, s46, s3
v_cmp_gt_u32 vcc, 32, v1
v_lshlrev_b32 v14, 3, v1
v_and_b32 v15, 7, v1
v_cndmask_b32 v16, v255, v8, vcc
v_cndmask_b32 v250, 0, -1, vcc
v_lshlrev_b32 v15, 4, v15
s_mov_b32 s55, {MOD2+2560}
s_lshl_b32 s56, s46, 7
s_add_u32 s56, s56, {MOD2+3*2560}
s_mov_b32 s57, 0x05040100
buffer_load_dwordx2 v[44:45], v14, {srd(sWR)}, 0 offen
buffer_load_dwordx2 v[46:47], v14, {srd(sWR)}, 0 offen offset:512
buffer_load_dwordx2 v[48:49], v14, {srd(sWR)}, 0 offen offset:1024
L_fz_mp:
buffer_load_dwordx4 v[20:23], v8, {srd(sWS)}, s55 offen sc1
buffer_load_dwordx4 v[24:27], v8, {srd(sWS)}, s55 offen offset:1024 sc1
buffer_load_dwordx4 v[28:31], v16, {srd(sWS)}, s55 offen offset:2048 sc1
buffer_load_dwordx4 v[56:59], v15, {srd(sWS)}, s56 offen sc1
s_waitcnt vmcnt(0)""")
for n, b in enumerate((28, 20, 24, 56)):
    g(f"v_perm_b32 v32, v{b+1}, v{b}, s57\nv_perm_b32 v33, v{b+3}, v{b+2}, s57\nv_xor_b32 v32, s{sTAG}, v32\nv_xor_b32 v33, s{sTAG}, v33")
    g("v_or_b32 v34, v32, v33\nv_and_b32 v34, v34, v250" if n == 0 else "v_or3_b32 v34, v34, v32, v33")
g("v_cmp_ne_u32 vcc, 0, v34\ns_sleep 4")
spin("L_fz_mp", "L_fz_mok")
g("L_fz_mok:\nv_mov_b32 v60, 0")
for k in range(4): g(f"v_and_b32 v{56+k}, 0xffff0000, v{56+k}")
for k in range(12):
    g(f"v_and_b32 v{20+k}, 0xffff0000, v{20+k}")
    g(f"v_lshlrev_b32 v32, 16, v{44+k//2}" if k % 2 == 0 else f"v_and_b32 v32, 0xffff0000, v{44+k//2}")
    g(f"v_fmac_f32 v60, v{20+k}, v32")
for r in (8, 4, 2, 1): g(f"v_add_f32_dpp v60, v60, v60 row_ror:{r} {DPP}")
g("v_mov_b32 v61, v60\nv_permlane16_swap_b32 v60, v61\nv_add_f32 v60, v60, v61\nv_mov_b32 v61, v60\nv_permlane32_swap_b32 v60, v61\nv_add_f32 v60, v60, v61")
g(f"""v_cmp_gt_u32 vcc, 24, v1
s_mul_i32 s47, s46, 86
s_lshr_b32 s47, s47, 8
v_cndmask_b32 v17, v255, v8, vcc
v_cndmask_b32 v250, 0, -1, vcc
s_lshl_b32 s48, s46, 12
s_add_u32 s48, s48, {YP}
v_mov_b32 v18, 0""")
assert all((f*86 >> 8) == f//3 for f in range(20))
TS("ready", True)
cand_poll("L_f")
TS("cand", True)
g(f"""v_readlane_b32 s50, v21, s45
v_readlane_b32 s51, v23, s45
v_add_f32 v60, v60, v24
v_cvt_pk_bf16_f32 v60, v60, v60
v_lshlrev_b32 v60, 16, v60
v_mul_f32 v60, 0xbfb8aa3b, v60
v_exp_f32 v60, v60
s_lshl_b32 s55, s45, 12
s_add_u32 s56, s46, s47
s_lshl_b32 s56, s56, 7
s_add_u32 s55, s55, s56
s_add_u32 s55, s55, {CBASE}
s_and_b32 s51, s51, 127
s_lshl_b32 s56, s51, 3
s_add_u32 s56, s56, s47
s_lshl_b32 s56, s56, 4
s_add_u32 s56, s56, {OUTD}
v_add_f32 v60, 1.0, v60
v_rcp_f32 v60, v60
s_and_b32 s50, s50, 2047
s_mul_i32 s50, s50, 1280
s_lshl_b32 s57, s46, 6
s_add_u32 s50, s50, s57
v_mul_f32 v56, v56, v60
v_mul_f32 v57, v57, v60
v_mul_f32 v58, v58, v60
v_mul_f32 v59, v59, v60
L_fz_bp:
buffer_load_dwordx4 v[52:55], v15, {srd(sWS)}, s55 offen sc1
buffer_load_dword v62, v18, {srd(sWS)}, s56 offen sc1
s_waitcnt vmcnt(0)
v_perm_b32 v32, v53, v52, s{sPA}
v_perm_b32 v33, v55, v54, s{sPB}
v_bitop3_b32 v32, v32, v33, s{sTAG} bitop3:0x56
v_xor_b32 v33, s{sTAG}, v62
v_or_b32 v32, v32, v33
v_cmp_ne_u32 vcc, 0, v32""")
spin("L_fz_bp", "L_fz_bok")
g("L_fz_bok:\ns_mov_b32 s55, 0xffffff00")
for k in range(4): g(f"v_and_b32 v{52+k}, s55, v{52+k}")
TS("row", True)
g("L_fz_yp:")
for n in range(4): g(f"buffer_load_dwordx4 {vr(20+4*n,4)}, v{17 if n==3 else 8}, {srd(sWS)}, s48 offen offset:{1024*n} sc1")
g("s_waitcnt vmcnt(0)")
for n in range(4):
    b = 20 + 4*n
    g(f"v_perm_b32 v36, v{b+1}, v{b}, s{sPA}\nv_perm_b32 v37, v{b+3}, v{b+2}, s{sPB}\nv_bitop3_b32 v{38+n}, v36, v37, s{sTAG} bitop3:0x56")
g("v_and_b32 v41, v41, v250\nv_or3_b32 v38, v38, v39, v40\nv_or_b32 v38, v38, v41\nv_cmp_ne_u32 vcc, 0, v38")
spin("L_fz_yp", "L_fz_yok")
g("L_fz_yok:")
TS("ypub", True)
for k in range(16): g(f"v_and_b32 v{20+k}, s55, v{20+k}")
g("v_pk_add_f32 v[20:21], v[20:21], v[24:25]\nv_pk_add_f32 v[22:23], v[22:23], v[26:27]\nv_pk_add_f32 v[28:29], v[28:29], v[32:33]\nv_pk_add_f32 v[30:31], v[30:31], v[34:35]\nv_pk_add_f32 v[20:21], v[20:21], v[28:29]\nv_pk_add_f32 v[22:23], v[22:23], v[30:31]")
for k in range(4): g(f"v_add_f32_dpp v{20+k}, v{20+k}, v{20+k} row_ror:8 {DPP}")
for sw in (16, 32):
    for k in range(4): g(f"v_mov_b32 v{24+k}, v{20+k}")
    for k in range(4): g(f"v_permlane{sw}_swap_b32 v{20+k}, v{24+k}")
    g("v_pk_add_f32 v[20:21], v[20:21], v[24:25]\nv_pk_add_f32 v[22:23], v[22:23], v[26:27]")
g(f"""v_pk_fma_f32 v[20:21], v[20:21], v[56:57], v[52:53]
v_pk_fma_f32 v[22:23], v[22:23], v[58:59], v[54:55]
v_cvt_pk_bf16_f32 v20, v20, v21
v_cvt_pk_bf16_f32 v21, v22, v23
s_mov_b64 exec, 0xff
buffer_store_dwordx2 v[20:21], v14, {srd(sOUT)}, s50 offen sc1
s_cmp_eq_u32 s46, 0
s_cbranch_scc0 L_fz_e
s_add_u32 s55, s{sE}, 1
v_mov_b32 v22, s55
s_mov_b64 exec, 1
buffer_store_dword v22, v18, {srd(sWS)}, 0 offen sc1
L_fz_e:
s_mov_b64 exec, -1""")
TS("stored", True)
g("L_fin:")
if P["probe"] >= 0:
    n = P["probe"]
    g(f"s_cmp_ge_u32 s2, 224\ns_cbranch_scc1 L_end" if P["pwg"] < 0 else f"s_cmp_lg_u32 s2, {P['pwg']}\ns_cbranch_scc1 L_end")
    g(f"s_waitcnt lgkmcnt(0)\ns_sub_u32 s55, s{64+2*n}, s64\ns_lshl_b32 s55, s55, 1\ns_add_u32 s55, s55, 5000\nL_pr:\ns_memrealtime s[56:57]\ns_waitcnt lgkmcnt(0)\ns_sub_u32 s56, s56, s64\ns_cmp_lt_u32 s56, s55\ns_cbranch_scc1 L_pr")
elif DEV:
    g("s_waitcnt vmcnt(0)")
    TS("fin")
    g(f"s_waitcnt lgkmcnt(0)\ns_lshl_b32 s55, s2, 2\ns_add_u32 s55, s55, s3\ns_lshl_b32 s55, s55, 7\ns_add_u32 s55, s55, {TSB}\nv_mov_b32 v20, 0")
    for n in range(16): g(f"v_writelane_b32 v20, s{64+2*n}, {n}")
    g(f"v_writelane_b32 v20, s{sSPIN}, 16\nv_lshlrev_b32 v21, 2, v1\ns_mov_b64 exec, 0x1ffff\nbuffer_store_dword v20, v21, {srd(sWS)}, s55 offen")
g("L_end:\ns_endpgm")

lines, added = pad_hazards(g.l)
HDR = open("/code/" + NAME + ".s.ref").read().split("; Override launch")[0]
txt = HDR + f"""; generated by dev/gen.py {' '.join(sys.argv[2:])}
; stamps: {' '.join(SETS[P['ts']])}
; @launch grid=(256,1,1) block=(256,1,1) lds=163840
.amdgcn_target "amdgcn-amd-amdhsa--gfx950"
.text
.globl {NAME}_kernel
.p2align 12
.type {NAME}_kernel,@function
{NAME}_kernel:
""" + "\n".join(lines) + f"""
.fill ({NAME}_kernel + 49664 - .) / 4, 4, 0xbf800000
.section .rodata,"a"
.p2align 6
.amdhsa_kernel {NAME}_kernel
  .amdhsa_next_free_vgpr 512
  .amdhsa_next_free_sgpr 102
  .amdhsa_accum_offset 256
  .amdhsa_group_segment_fixed_size 0
  .amdhsa_kernarg_size 104
  .amdhsa_user_sgpr_count 2
  .amdhsa_user_sgpr_kernarg_segment_ptr 1
  .amdhsa_system_sgpr_workgroup_id_x 1
  .amdhsa_float_denorm_mode_32 3
  .amdhsa_float_denorm_mode_16_64 3
.end_amdhsa_kernel
"""
open(sys.argv[1], "w").write(txt)
print(f"{len(lines)} lines, {added} pad states")
```

```python
import re

class G:
    def __init__(self):
        self.l = []; self.vmq = []; self.lgq = []
    def __call__(self, s):
        for x in s.split("\n"):
            x = x.strip()
            if x: self.l.append(x)
        return self
    def vm(self, s, tag):
        self(s); self.vmq.append(tag)
    def lg(self, s, tag):
        self(s); self.lgq.append(tag)
    def _cnt(self, q, tags, mx):
        if tags is None: return None
        if tags == "*":
            if not q: return None
            del q[:]; return 0
        if isinstance(tags, str): tags = [tags]
        idx = [i for i, t in enumerate(q) if t in tags]
        if not idx: return None
        n = len(q) - 1 - idx[-1]
        if n > mx:
            n = mx
        del q[:len(q) - n]
        return n
    def waitstr(self, vm=None, lg=None):
        a = self._cnt(self.vmq, vm, 63); b = self._cnt(self.lgq, lg, 15)
        p = []
        if a is not None: p.append(f"vmcnt({a})")
        if b is not None: p.append(f"lgkmcnt({b})")
        return "s_waitcnt " + " ".join(p) if p else None
    def wait(self, vm=None, lg=None):
        s = self.waitstr(vm, lg)
        if s: self(s)
    def item(self, it):
        if isinstance(it, str): self(it)
        elif it[0] == 'vm': self.vm(it[1], it[2])
        elif it[0] == 'lg': self.lg(it[1], it[2])
        elif it[0] == 'wait': self.wait(it[1], it[2])
        elif it[0] == 's': self(it[1])
        else: raise ValueError(it)

def regs(op):
    op = op.strip()
    neg = op.lstrip("-")
    if neg.startswith("abs(") or neg.startswith("|"): neg = neg.strip("|").replace("abs(", "").rstrip(")")
    m = re.fullmatch(r"([vas])(\d+)", neg)
    if m: return {(m.group(1), int(m.group(2)))}
    m = re.fullmatch(r"([vas])\[(\d+):(\d+)\]", neg)
    if m: return {(m.group(1), i) for i in range(int(m.group(2)), int(m.group(3)) + 1)}
    if neg in ("vcc", "vcc_lo", "vcc_hi"): return {("s", "vcc")}
    if neg in ("exec", "exec_lo", "exec_hi"): return {("s", "exec")}
    if neg == "m0": return {("s", "m0")}
    return set()

TRANS = ("v_exp_f32", "v_log_f32", "v_rcp_f32", "v_rsq_f32", "v_sqrt_f32")
class I:
    def __init__(self, t):
        self.t = t
        p = t.split(None, 1); self.mn = mn = p[0]
        ops = [o.strip() for o in p[1].split(",")] if len(p) > 1 else []
        clean = []
        for o in ops:
            clean.append(o.split()[0] if o else o)
        self.lds = " lds" in t
        R = [regs(o) for o in clean]
        U = lambda xs: set().union(*xs) if xs else set()
        self.cls = "other"; self.d = set(); self.s = set(); self.ab = set(); self.c = set(); self.lanesel = set(); self.data = set()
        if mn.startswith("v_mfma"):
            self.cls = "mfma"; self.d = R[0]; self.ab = R[1] | R[2]; self.c = R[3]; self.s = self.ab | self.c
        elif mn.startswith("v_"):
            self.cls = "valu"
            if "swap" in mn: self.d = R[0] | R[1]; self.s = set(self.d)
            else:
                self.d = R[0]; self.s = U(R[1:])
                if mn.startswith(("v_fmac", "v_dot2c", "v_writelane")) or "_dpp" in mn: self.s |= R[0]
                if mn.startswith(("v_readlane", "v_writelane")): self.lanesel = R[2]
        elif mn.startswith(("buffer_", "global_")):
            self.cls = "vmem"
            if "load" in mn and not self.lds: self.d = R[0]; self.s = U(R[1:])
            else: self.s = U(R)
            if mn.startswith("buffer_store") and mn.endswith(("x3", "x4")): self.data = R[0]
        elif mn.startswith("ds_"):
            self.cls = "ds"
            if "read" in mn or "swizzle" in mn or "permute" in mn: self.d = R[0]; self.s = U(R[1:])
            else: self.s = U(R)
        elif mn.startswith("s_"):
            self.cls = "salu"
            if R and not mn.startswith(("s_cmp", "s_waitcnt", "s_cbranch", "s_branch", "s_nop", "s_sleep", "s_bitcmp")): self.d = R[0]; self.s = U(R[1:])
        self.states = 1
        if mn == "s_nop": self.states = int(ops[0]) + 1
        self.trans = mn.startswith(TRANS); self.dot = mn.startswith("v_dot"); self.dpp = "_dpp" in mn
        self.perm = mn.startswith("v_permlane"); self.rdl = mn.startswith(("v_readlane", "v_readfirstlane"))

def need(p, c):
    n = 0
    V = lambda S: {r for r in S if r[0] in "va"}
    S_ = lambda S: {r for r in S if r[0] == "s"}
    if p.cls == "valu":
        if V(p.d) & V(c.s):
            if c.perm or c.dpp or c.cls == "mfma": n = max(n, 2)
            if c.rdl: n = max(n, 1)
            if p.trans and c.cls == "valu" and not c.trans: n = max(n, 1)
        if p.dot and (V(p.d) & (V(c.s) | V(c.d))) and c.cls in ("valu", "mfma", "vmem", "ds"):
            if c.mn != p.mn: n = max(n, 3)
        if S_(p.d) & S_(c.s):
            if c.cls == "valu": n = max(n, 4 if (S_(p.d) & c.lanesel) else 2)
            if c.cls == "vmem": n = max(n, 5)
    if p.cls == "mfma":
        if c.cls == "mfma":
            if p.d & c.ab: n = max(n, 8)
            if p.d & c.c and p.d != c.c: n = max(n, 6)
            if p.d & c.c and p.d == c.c and p.mn != c.mn: n = max(n, 6)
        elif c.cls in ("valu", "vmem", "ds"):
            if p.d & (c.s | c.d): n = max(n, 8)
            if c.cls == "valu" and p.c & c.d: n = max(n, 3)
    if p.data and (p.data & c.d): n = max(n, 2 if c.cls == "valu" else 1)
    if p.cls == "salu" and ("s", "m0") in p.d and c.cls == "vmem" and c.lds: n = max(n, 1)
    return n

def pad_hazards(lines, verbose=False):
    out = []; hist = []; added = 0
    for t in lines:
        if t.endswith(":") or t.startswith((".", ";")):
            out.append(t); continue
        c = I(t)
        dist = 0; req = 0
        for p in reversed(hist):
            k = need(p, c) - dist
            if k > req: req = k
            dist += p.states
            if dist >= 8: break
        if req > 0:
            nop = I(f"s_nop {req-1}"); out.append(nop.t); hist.append(nop); added += req
            if verbose: print("pad", req, "before", t)
        out.append(t); hist.append(c)
        if len(hist) > 12: hist = hist[-12:]
    return out, added

def kind(it):
    if isinstance(it, str): return "S" if it.startswith("s_") else "V"
    return "M" if it[0] in ("vm", "lg") else "S"
def cost(it):
    t = it if isinstance(it, str) else (it[1] if isinstance(it[1], str) else "")
    k = kind(it)
    if k == "M":
        if t.startswith(("ds_write_b128", "buffer_store_dwordx4")): return 6
        if t.startswith(("ds_write_b64", "buffer_store_dwordx2")): return 4
        if t.startswith("ds_write"): return 3
        return 2
    if k == "V" and t.startswith(("v_exp", "v_rcp", "v_rsq", "v_permlane")): return 2
    return 1

def gaps(g, mfmas, mem, valu, pre=None, tail=None, wgap=0, wdep=2, fs=None, vmsolo=False, pool=None):
    pre = {k: list(v) for k, v in (pre or {}).items()}
    n = len(mfmas)
    memop = {}; sq = {k: [] for k in range(-1, n)}
    for j, its in mem.items():
        k = [kind(x) for x in its].index("M")
        memop[j] = its[k]
        sq[j-1] += its[:k]
        sq[j] += its[k+1:]
    for j, its in pre.items(): sq[j-1] = sq[j-1] + its
    sq[n-1] += (tail or [])
    vq = list(valu); over = 0; lastw = -99; wr = {}
    for it in sq[-1]: g.item(it)
    for i, m in enumerate(mfmas):
        g(m)
        used = 0
        if i in memop:
            g.item(memop[i]); used += cost(memop[i])
        for it in sq[i]:
            n0 = len(g.l); g.item(it); used += len(g.l) - n0
        if vmsolo and i in memop and memop[i][0] == "vm" and used == 2:
            if fs: g(fs.pop(0))
            used = 3
        k0 = 0; blocked = set()
        if fs and used == 0 and not (vq and vq[0][0] <= i and kind(vq[0][1]) != "V"):
            g(fs.pop(0)); used = 1
        while k0 < len(vq) and vq[k0][0] <= i:
            it = vq[k0][1]; k = kind(it)
            if it[0] == "pool":
                if k0: break
                if not pool:
                    vq.pop(0); continue
                while max(used, 1) < 3:
                    c = [e for e in pool if 7 <= (i - e[0]) % 20 <= 17]
                    if not c: break
                    c.sort(key=lambda e: -((i - e[0]) % 20))
                    pool.remove(c[0]); g(c[0][1]); used = max(used, 1) + 1
                break
            if it[0] == "gapwait":
                if k0: break
                if it[1] > 0:
                    vq[0] = (vq[0][0], ("gapwait", it[1] - 1)); break
                vq.pop(0); continue
            if k == "M":
                busy = (any((j in memop and memop[j][0] == "lg") for j in (i+1, i+2)) or i >= n - 2) if cost(it) >= 6 else False
                if used or busy or k0 or i - lastw < wgap or any(i - wr.get(r, -99) < wdep for r in I(it[1]).s):
                    blocked |= I(it[1]).s; k0 += 1; continue
                used += cost(it)
                if cost(it) > 2: lastw = i
            elif k == "V":
                st = max(used, 1)
                if st + cost(it) > 3 or (I(it).d & blocked): break
                used = st + cost(it)
                for r in I(it).d: wr[r] = i
            else:
                if used + 1 > 3 or k0: break
                used += 1
            g.item(it); vq.pop(k0)
        over += max(0, used - 3)
    g.over = getattr(g, "over", 0) + over
    return vq

def listsched(items, keep_mem_order=True):
    txt = [it if isinstance(it, str) else it[1] for it in items]
    ins = [I(t) for t in txt]
    n = len(ins)
    EX = ("s", "exec")
    rd = []; wr = []
    for x in ins:
        r = set(x.s); w = set(x.d)
        if x.cls in ("valu", "vmem", "ds"): r.add(EX)
        if x.cls == "vmem" and x.lds: r.add(("s", "m0"))
        if x.cls == "salu": r.add("scc"); w.add("scc")
        if keep_mem_order and x.cls in ("vmem", "ds"): r.add(x.cls); w.add(x.cls)
        if x.mn.startswith("v_cndmask") and "vcc" in x.t: r.add(("s", "vcc"))
        rd.append(r); wr.append(w)
    pred = [set() for _ in range(n)]; succ = [set() for _ in range(n)]
    for j in range(n):
        for i in range(j):
            if (wr[i] & rd[j]) or (wr[i] & wr[j]) or (rd[i] & wr[j]):
                pred[j].add(i); succ[i].add(j)
    def c(i):
        x = ins[i]
        if x.cls == "mfma": return 8
        return 4*cost(items[i])
    prio = [0]*n
    for i in reversed(range(n)):
        prio[i] = c(i) + max([prio[j] + 4*need(ins[i], ins[j]) for j in succ[i]], default=0)
    done = {}; order = []; t = 0; state = 0; mfree = 0; vfree = 0
    left = set(range(n))
    while left:
        best = None
        for j in left:
            if any(i not in done for i in pred[j]): continue
            x = ins[j]
            stall = 4*max([need(ins[i], x) - (state - done[i] - 1) for i in pred[j]] + [0])
            ti = t + stall
            if x.cls == "mfma": ti = max(ti, mfree)
            elif x.cls == "valu":
                ti = max(ti, vfree)
                if x.mn.startswith(("v_pk_", "v_dot")): ti = max(ti, mfree + 12 if mfree > t - 12 else ti)
            key = (ti - t, -prio[j], j)
            if best is None or key < best[0]: best = (key, j, ti, stall)
        _, j, ti, stall = best
        x = ins[j]
        state += stall//4
        done[j] = state; state += 1
        if x.cls == "mfma":
            mfree = ti + 16; vfree = ti + 8; t = ti + 4
        else: t = ti + 4*cost(items[j])
        order.append(items[j]); left.remove(j)
    return order, t
```

```python
import sys, struct, math
from gl import *
NAME = "adaLN_cond__sliding_local_dilated__moe_arch_mod__prompt"
P = dict(dev=0, lead=10, lpk=4, odelay=70, wopull=0, spin=1 << 16, adelay=0, mve=0, cpos=0, fsc1=1, nbp=24, bpk=9, bpk0=4, ysp=8, csp=-1, stR=1, stP=0, cdR=1, cdP=0, yR=1, yP=0, vmsolo=20, sw="D0/A,N:1,P:c,L0:C,L1,F:3,B,L2:4z,L3:oo,L4:Gfoo@0-100", sm="0D/A,L0:1@50-100,P:2,L1:3,B,L2:4z,L3:oo,L4:Gfoo@0-100", map=1, sdelay=0, nrm=0, a2=0, nx1=5, n0=5, n1=5, fgpos=30, fast=1, stpre=1, attpk=3, astep=14, no=8, ostep=4, x0=40, x1=100, flpos=50, drop=0, mpace=60, wdep=2, wsplit=2, wgap=2, vpk=48, maxlead=6, pz0=6, nold=0, xpk=2, wo0=2, rot=7, ts=0, cyc=0, probe=-1, pwg=-1, wsc1=1)
for a in sys.argv[2:]:
    k, v = a.split("="); P[k] = v if k in ("sw", "sm") else int(v)
DEV = P["dev"]
f2u = lambda f: struct.unpack("<I", struct.pack("<f", f))[0]

YS, CS_ = 0x62000, 0x64000
PUB1, FLG, PFL, MOD2, STATS, CAND, CROW, CBASE, OUTD, YP, WPP, OPP, TSB = 0x1000, 0xD0000, 0xE0000, 0x10000, 0x20000, 0x60000, 0x70000, 0x80000, 0xA0000, 0xB0000, 0x100000, 0x400000, 0x700000
WSZ = 0x800000
OOB = 0x40000000
HB, XR, OST, MV, AM, GS = 56320, 122880, 138240, 152320, 135168, 158720
WST = 0
sWS, sX, sWQ, sWM, sC, sWO, sWR, sOUT, sPZ = 4, 8, 12, 16, 20, 24, 28, 32, 36
sTAG, sE, sXC, sI, sHG, sXB, sOB, sRB3, sCG = 40, 41, 42, 43, 44, 45, 46, 47, 96
sSPIN, sPA, sPB = 97, 98, 99
srd = lambda s: f"s[{s}:{s+3}]"
g = G()
nts = [0]
SETS = {0: "start Wland p1done ln2 gathered mfma0 qkvend ostored bar6 o0chk woend stpub stok candpub mainend".split(),
        1: "start karg addr Wland wsiss ln0 p1done ln1 ln2 ln3done gathered mod0 mfma0 k1".split(),
        2: "start gathered mfma0 k1 k2 k4 k8 k12 k16 qkvend att1 ostored".split(),
        3: "start qkvend att1 att2 att3 att4 bar5 ostored bar6 mvok oiss plend o0chk o5 woend".split(),
        5: "start k1 k2 k3 k4 k5 k6 k7 k8 k9 k10 k11 k12 k13 k14".split(),
        6: "start k7 k8 k9 k10 k11 k12 k13 k14 k15 k16 k17 k18 k19 qkvend".split(),
        7: "start addr Wland wsiss p1done xw0 xw1 xw2 xw3 xw4 ln3done gathered mod0 k1".split(),
        4: "start woend stpub stok amw amb candpub mainend".split()}
SVC = "start - - ready cand row ypub stored t0 t1 t2 t3".split()
def TS(name, svc=False):
    names = SVC if svc else SETS[P["ts"]]
    if name == "fin": n = 15
    elif name in names: n = names.index(name)
    else: return
    if DEV: g(f"{'s_memtime' if P['cyc'] else 's_memrealtime'} s[{64+2*n}:{65+2*n}]")
def vr(b, n): return f"v[{b}:{b+n-1}]" if n > 1 else f"v{b}"
def ar(b, n): return f"a[{b}:{b+n-1}]"
def spin(lab_back, lab_out):
    g(f"s_add_u32 s{sSPIN}, s{sSPIN}, 1\ns_cmp_gt_u32 s{sSPIN}, {P['spin']}\ns_cbranch_scc1 {lab_out}\ns_cbranch_vccnz {lab_back}")
def ppoll(lab, R, loads, check, pace):
    n = len(loads(0))
    def nap():
        for _ in range(pace//16): g("s_nop 15")
        if pace % 16: g(f"s_nop {pace%16-1}")
    for j in range(R - 1):
        g("\n".join(loads(j))); nap()
    g(f"{lab}_p:")
    for j in range(R):
        g("\n".join(loads((j + R - 1) % R)))
        g(f"s_waitcnt vmcnt({n*(R-1)})")
        check(j)
        g(f"s_cbranch_vccz {lab}_ok")
        nap()
    g(f"s_add_u32 s{sSPIN}, s{sSPIN}, 1\ns_cmp_le_u32 s{sSPIN}, {P['spin']}\ns_cbranch_scc1 {lab}_p\n{lab}_ok:")
def silu(v, t):
    g(f"v_mul_f32 v{t}, 0xbfb8aa3b, v{v}\nv_exp_f32 v{t}, v{t}\nv_add_f32 v{t}, 1.0, v{t}\nv_rcp_f32 v{t}, v{t}\nv_mul_f32 v{v}, v{v}, v{t}")
DPP = "row_mask:0xf bank_mask:0xf"
ool = []

g("s_cmp_ge_u32 s2, 256\ns_cbranch_scc1 L_end")
TS("start")
g(f"""s_load_dwordx4 s[8:11], s[0:1], 0
s_load_dwordx4 s[20:23], s[0:1], 64
s_load_dwordx2 s[4:5], s[0:1], 96
s_getpc_b64 s[48:49]
v_lshrrev_b32 v4, 6, v0
v_and_b32 v1, 63, v0
s_lshr_b32 s{sI}, s2, 3
v_readfirstlane_b32 s3, v4
v_mad_u32_u24 v5, v4, 3, v1
s_mul_i32 s50, s{sI}, 1536
v_lshl_add_u32 v5, v5, 7, s50
s_mov_b64 exec, 7""")
g.vm("global_load_dword v19, v5, s[48:49]", "pf")
g(f"""s_mov_b64 exec, -1
s_and_b32 s{sXC}, s2, 7
v_and_b32 v2, 15, v1
v_lshrrev_b32 v3, 4, v1
v_mov_b32 v29, 0
s_mov_b32 s{sWS+2}, {WSZ}
s_mov_b32 s{sWS+3}, 0x20000
s_lshl_b32 s49, s3, 10
s_cmp_ge_u32 s2, 224
s_cbranch_scc1 L_svc
s_mov_b32 m0, s49
s_mov_b32 s{sWQ+3}, 0x20000""")
if P["map"] == 2: MAPB = f"s_lshr_b32 s57, s{sI}, 2\ns_and_b32 s{sHG}, s{sXC}, 1\ns_lshl_b32 s{sHG}, s{sHG}, 2\ns_and_b32 s58, s{sI}, 3\ns_add_u32 s{sHG}, s{sHG}, s58"
else: MAPB = f"s_and_b32 s57, s{sXC}, 1\ns_mul_i32 s57, s57, 28\ns_add_u32 s57, s57, s{sI}\ns_and_b32 s{sHG}, s57, 7\ns_lshr_b32 s57, s57, 3"
PERMS = {0: ["01234"], 1: ["01234", "34201"], 2: ["01234", "10324"], 3: ["01234", "12043", "20134", "01243"], 4: ["01234", "12304", "23014", "30124"],
         5: ["01234", "12340", "23401", "34012", "40123", "03142", "14203", "20314"], 6: [], 7: [], 8: []}[P["rot"]]
sR = sPA
pk_ = lambda p: sum(int(ch) << (4*n) for n, ch in enumerate(p))
g(f"""s_lshr_b32 s55, s{sXC}, 2
s_bfe_u32 s56, s{sXC}, 0x10001
s_mul_i32 s56, s56, 7
{MAPB}
s_add_u32 s56, s56, s57
s_mul_i32 s57, s56, 73
s_lshl_b32 s{sXB}, s57, 1
s_add_u32 s{sXB}, s{sXB}, s55
s_mul_i32 s{sXB}, s{sXB}, 1280
s_mul_i32 s58, s{sI}, 37
s_lshr_b32 s58, s58, 8
s_mul_i32 s60, s58, 7
s_sub_u32 s{sCG}, s{sI}, s60
s_lshl_b32 s{sRB3}, s{sXC}, 2
s_add_u32 s{sRB3}, s{sRB3}, s58
s_lshl_b32 s60, s{sCG}, 2
s_lshr_b32 s60, 0x4932180, s60
s_and_b32 s60, s60, 15
s_cmp_ge_u32 s60, 8
s_cselect_b32 s61, 2, 5
s_cselect_b32 s63, 12, 0
s_mul_i32 s58, s58, s61
s_add_u32 s58, s58, s60
s_add_u32 s58, s58, s63
s_lshl_b32 s58, s58, 3
s_add_u32 s{sR}, s58, s{sXC}""")
if P["rot"] == 6:
    g("s_and_b32 s60, s60, 7\ns_lshl_b32 s60, s60, 2\ns_mov_b32 s62, 0x21043210\ns_mov_b32 s63, 3\ns_lshr_b64 s[62:63], s[62:63], s60")
elif P["rot"] == 7:
    g("s_and_b32 s60, s60, 3\ns_lshl_b32 s60, s60, 2\ns_lshr_b32 s62, 0x3214321, s60\ns_lshl_b32 s62, s62, 4")
elif P["rot"] == 8:
    g(f"s_and_b32 s60, s60, 1\ns_cmp_eq_u32 s60, 0\ns_cselect_b32 s62, {pk_('01234')}, {pk_('02143')}")
else:
    g(f"s_and_b32 s63, s{sHG}, {len(PERMS)-1}\ns_mov_b32 s62, {pk_(PERMS[0])}")
    for t in range(1, len(PERMS)): g(f"s_cmp_eq_u32 s63, {t}\ns_cselect_b32 s62, {pk_(PERMS[t])}, s62")
xb = lambda n: f"s_bfe_u32 s61, s62, {0x40000 + 4*n}\ns_mul_i32 s61, s61, 40960\ns_add_u32 s61, s61, s{sXB}"
g(xb(0) + f"""
v_lshrrev_b32 v5, 4, v0
v_mul_u32_u24 v4, 2560, v5
v_lshl_add_u32 v4, v2, 4, v4
s_cmp_lt_u32 s{sR}, 160
s_cbranch_scc1 L_roleW""")
def xl(i):
    o = [('vm', f"buffer_load_dwordx4 {vr(100+(i*5+c)*4,4)}, v4, {srd(sX)}, s61 offen offset:{256*c}", f"x{i}") for c in range(5)]
    return [[x] for x in o[:4]] + [[o[4], ('s', xb(i+1) if i < 4 else "")]]
def init(role):
    g.vmq[:] = ["pf"]
    if role == "M":
        assert all((v*13 >> 8) == v//20 for v in range(64))
        g(f"""s_sub_u32 s50, s{sR}, 160
s_mul_i32 s52, s50, 13
s_lshr_b32 s52, s52, 8
s_mul_i32 s53, s52, 20
s_sub_u32 s53, s50, s53
s_mul_i32 s51, s52, 28
s_add_u32 s51, s51, s3
s_mul_i32 s51, s51, 61440
s_lshl_b32 s54, s53, 7
s_add_u32 s51, s51, s54
s_mul_i32 s54, s52, 448
s_and_b32 s58, s3, 1
s_lshl_b32 s58, s58, 2
v_and_b32 v20, 1, v3
v_lshl_or_b32 v20, v20, 1, s58
v_and_b32 v21, 7, v1
v_xor_b32 v20, v20, v21
v_lshrrev_b32 v21, 3, v1
v_mul_u32_u24 v21, 480, v21
v_add_lshl_u32 v20, v20, v21, 4
v_lshlrev_b32 v39, 3, v1
s_mov_b32 s{sWQ+2}, 4915200
s_waitcnt lgkmcnt(0)
s_mov_b32 s{sWQ}, s22
s_mov_b32 s{sWQ+1}, s23
s_mov_b32 s{sC+2}, 1280
s_mov_b32 s{sC+3}, 0x20000""")
    else:
        assert all((u*1639 >> 16) == u//40 for u in range(1024))
        g("s_mov_b32 s58, 640\nv_lshlrev_b32 v24, 4, v0")
        for n in range(4):
            if n: g(f"v_add_u32 v25, {256*n}, v0\nv_add_u32 v24, 4096, v24")
            g(f"v_mul_u32_u24 v26, 1639, v{25 if n else 0}\nv_lshrrev_b32 v26, 16, v26\nv_mad_u32_u24 v{20+n}, v26, s58, v24")
        g(f"""s_lshr_b32 s50, s{sR}, 1
s_and_b32 s52, s{sR}, 1
s_mul_i32 s51, s50, 30720
s_mul_i32 s53, s52, 640
s_add_u32 s51, s51, s53
s_cmp_eq_u32 s3, 3
s_cselect_b32 s53, {OOB}, s51
s_mov_b32 s{sWQ+2}, 2457600
s_waitcnt lgkmcnt(0)
s_mov_b32 s{sWQ}, s10
s_mov_b32 s{sWQ+1}, s11""")
    g(f"s_mov_b32 s{sX+2}, 2621440\ns_mov_b32 s{sX+3}, 0x20000")
    TS("karg")
    g.vm(f"buffer_load_dword v42, v29, {srd(sWS)}, 0 offen sc1", "E")
    if role == "M": g.vm(f"buffer_load_dwordx2 v[40:41], v39, {srd(sC)}, s54 offen", "c")
    for tok in SCHED[role][0]:
        if tok == "D" and role == "M":
            for n in range(7):
                g.vm(f"buffer_load_dwordx4 v20, {srd(sWQ)}, s51 offen nt lds", "W")
                if n < 6: g(f"s_add_u32 m0, m0, 4096\ns_add_u32 s51, s51, {32*7680}")
        elif tok == "D":
            for n in range(4):
                g.vm(f"buffer_load_dwordx4 v{20+n}, {srd(sWQ)}, s{53 if n==3 else 51} offen nt lds", "W")
                if n < 3: g("s_add_u32 m0, m0, 4096")
        else: emit(xl(int(tok)))
    return list(g.vmq)
def emit(groups):
    for gr in groups:
        for it in gr: g.item(it)
def sprinkle(text, groups, lo=0.0, hi=1.0):
    L = [x for x in text if x]
    n = len(groups)
    pos = [int(len(L)*(lo + (hi-lo)*k/max(1, n))) for k in range(n)]
    for k, x in enumerate(L):
        while groups and pos[0] <= k:
            pos.pop(0); emit([groups.pop(0)])
        g.item(x)
    emit(groups)
def parse(t):
    a, b = t.split("/")
    return a, [x.split(":") for x in b.split(",")]
SCHED = {"W": parse(P["sw"]), "M": parse(P["sm"])}
qM = init("M"); g("s_branch L_rolej\nL_roleW:"); qW = init("W"); g("L_rolej:")
A = []
def a_(t):
    for x in t.split("\n"):
        x = x.strip()
        if x.startswith("s_cselect"): A[-1] += "\n" + x
        else: A.append(x)
a_(f"""s_load_dwordx2 s[{sWO}:{sWO+1}], s[0:1], 16
s_load_dwordx2 s[{sWR}:{sWR+1}], s[0:1], 32
s_load_dwordx2 s[{sOUT}:{sOUT+1}], s[0:1], 80""")
for sr, sz in ((sWO, 819200), (sWR, 1280), (sOUT, 2621440)): a_(f"s_mov_b32 s{sr+2}, {sz}\ns_mov_b32 s{sr+3}, 0x20000")
AW = f"""v_bfe_u32 v30, v1, 2, 2
v_and_b32 v31, 3, v1
v_max_u32 v32, 1, v31
v_add_u32 v32, -1, v32
v_cmp_eq_u32 vcc, 3, v3
v_lshlrev_b32 v33, 3, v31
v_mul_u32_u24 v30, 3, v30
v_cndmask_b32 v32, v3, v32, vcc
v_cndmask_b32 v33, v33, 32, vcc
v_add_u32 v30, v30, v32
v_mul_u32_u24 v30, 640, v30
s_mul_i32 s54, s3, 160
v_add3_u32 v35, v30, v33, s54
s_lshl_b32 s52, s52, 2
s_add_u32 s52, s52, s3
s_mul_i32 s52, s52, 80
s_add_u32 s52, s52, s50
s_lshl_b32 s51, s52, 12
s_add_u32 s51, s51, {WPP}
s_lshl_b32 s53, s52, 6
s_add_u32 s53, s53, {FLG}""".split("\n")
a_(f"""s_mov_b32 s{sSPIN}, 0
v_mov_b32 v255, {OOB}
v_lshlrev_b32 v36, 4, v1""")
assert all((i*37 >> 8) == i//7 for i in range(32))
assert all(((max(64*r, 7) - 7)*899 >> 16) == (max(64*r, 7) - 7)//73 for r in range(16))
a_(f"s_mul_i32 s36, s55, 14\ns_add_u32 s100, s36, s56")
FS2 = f"""s_lshl_b32 s100, s100, 3
s_add_u32 s100, s100, s{sHG}
s_lshl_b32 s100, s100, 6
s_add_u32 s100, s100, {PFL}
s_and_b32 s37, s{sRB3}, 15
s_lshl_b32 s37, s37, 6
s_max_u32 s37, s37, 7
s_sub_u32 s37, s37, 7
s_mul_i32 s37, s37, 899
s_lshr_b32 s37, s37, 16
s_min_u32 s37, s37, 12
s_add_u32 s37, s37, s36
s_lshl_b32 s101, s37, 3
s_bfe_u32 s37, s{sXC}, 0x10001
s_mul_i32 s37, s37, 7
s_add_u32 s37, s37, s36
s_lshl_b32 s37, s37, 3
s_and_b32 s38, s{sXC}, 1
s_mul_i32 s38, s38, {4 if P["map"] == 2 else 28}
s_add_u32 s21, s37, s38
s_sub_u32 s20, s{sI}, s{sCG}
s_getreg_b32 s19, hwreg(HW_REG_XCC_ID, 0, 4)"""
a_(f"""s_cmp_eq_u32 s56, 0
s_cselect_b32 s58, 0, 7
s_add_u32 s58, s58, s57
s_add_u32 s60, s57, 80
s_min_u32 s60, s60, 1024
s_sub_u32 s60, s60, s58
s_andn2_b32 s59, s58, 15
s_lshl_b32 s54, s55, 10
s_add_u32 s54, s54, s59
s_lshl_b32 s{sOB}, s{sHG}, 1
s_add_u32 s{sOB}, s{sOB}, s54
s_mul_i32 s{sOB}, s{sOB}, 1280
s_add_u32 s{sOB}, s{sOB}, {OPP}
s_sub_u32 s54, s59, s58
s_sub_u32 s59, s59, s57
s_mul_i32 s59, s59, 176
s_add_u32 s59, s59, {OST}
v_add_u32 v33, s54, v2
v_mul_u32_u24 v34, 175, v2
v_add3_u32 v34, v34, v0, s59
s_mov_b32 s54, 2656
s_mov_b32 s58, 1120""")
assert all((v*410 >> 16) == v//160 for v in range(1024))
for n in range(4):
    if n: a_(f"v_add_u32 v30, {256*n}, v0")
    a_(f"""v_mul_u32_u24 v31, 410, v{30 if n else 0}
v_lshrrev_b32 v31, 16, v31
v_lshl_add_u32 v32, v31, 4, v33
v_cmp_gt_u32 vcc, s60, v32
v_mad_u32_u24 v32, v31, s58, v{30 if n else 0}
v_mad_u32_u24 v{15+n}, v31, s54, v34
v_lshlrev_b32 v32, 4, v32
v_cndmask_b32 v{11+n}, v255, v32, vcc""")
a_(f"""s_mul_i32 s58, s3, 80
v_add_u32 v30, s58, v1
s_mul_i32 s58, s3, 1280
s_add_u32 s58, s58, 1024
v_lshlrev_b32 v248, 4, v30
v_lshl_add_u32 v249, v1, 2, s58
v_add_u32 v251, {GS}, v248
v_add_u32 v250, {GS}, v249
v_cmp_le_u32 vcc, 160, v30
v_min_u32 v247, 19, v1
v_lshlrev_b32 v247, 6, v247
v_cndmask_b32 v252, 0, 1.0, vcc
v_cmp_gt_u32 vcc, 4, v1
s_mov_b32 s56, {PUB1}
s_mov_b32 s57, {PUB1+5120}
v_cndmask_b32 v246, v255, v36, vcc
s_mul_i32 s60, s{sHG}, 5120
s_mul_i32 s58, s3, 1280
s_add_u32 s60, s60, s58
s_add_u32 s60, s60, {FLG}
s_mov_b32 s58, {PUB1+10240}""")
HW = (7, 253, 254, 244, 245)
a_(f"""v_lshlrev_b32 v30, 12, v3
v_lshl_add_u32 v30, v2, 4, v30
v_add_u32 v5, s49, v30
v_lshrrev_b32 v32, 2, v2
v_cmp_ne_u32 vcc, 1, v32
v_lshrrev_b32 v30, 4, v0
v_and_b32 v31, 7, v2
v_cndmask_b32 v6, v255, v5, vcc
v_xor_b32 v30, v30, v31
v_lshlrev_b32 v30, 4, v30
v_and_b32 v33, 3, v2
v_lshl_add_u32 v30, v33, 8, v30
v_mul_u32_u24 v32, 5120, v32
s_mov_b32 s54, {HB}
v_add3_u32 v30, v30, v32, s54
""" + "\n".join(f"s_bfe_u32 s63, s62, {0x40000+4*n}\ns_lshl_b32 s63, s63, 10\nv_add_u32 v{HW[n]}, s63, v30" for n in range(5)) + f"""
v_xor_b32 v30, v2, v3
v_lshlrev_b32 v30, 4, v30
v_lshl_add_u32 v8, v3, 8, v30
v_xor_b32 v9, 64, v8
v_add_u32 v8, s54, v8
v_add_u32 v9, s54, v9
v_lshlrev_b32 v10, 5, v2
v_add_u32 v10, {GS}, v10
s_mul_i32 s59, s{sHG}, 327680
s_add_u32 s59, s59, {WPP}""")
def st3_addr():
    o = []
    o += ["v_cmp_le_u32 vcc, 24, v1", "v_subrev_u32 v30, 24, v1", "v_mov_b32 v32, 0xa00", "v_cndmask_b32 v30, v1, v30, vcc", "v_cndmask_b32 v32, 0, v32, vcc",
          "v_cmp_gt_u32 vcc, s17, v30", "v_lshl_add_u32 v32, v30, 4, v32", "v_lshlrev_b32 v31, 3, v30",
          "v_cndmask_b32 v238, v255, v32, vcc", "v_cndmask_b32 v239, v255, v31, vcc", "v_cndmask_b32 v230, 0, -1, vcc",
          "v_min_u32 v30, 6, v2", "v_add_u32 v30, s20, v30", *(["v_and_b32 v31, 3, v30", "v_lshrrev_b32 v30, 2, v30", "v_lshl_add_u32 v30, v30, 3, v31"] if P["map"] == 2 else []),
          "v_cmp_gt_u32 vcc, 16, v1", "v_add_u32 v30, s21, v30", "v_add_u32 v31, s101, v1", "v_cndmask_b32 v30, v30, v31, vcc", "v_lshlrev_b32 v231, 6, v30"]
    return o
assert all((u*5462 >> 16) == u//12 for u in range(192))
S3 = (f"""s_mul_i32 s52, s{sCG}, 192
s_mul_i32 s48, s3, 20480
s_add_u32 s48, s48, s52
s_mul_i32 s49, s3, 3072
s_lshl_b32 s53, s{sRB3}, 2
s_add_u32 s53, s53, s3
s_and_b32 s50, s53, 63
s_lshl_b32 s50, s50, 5
s_lshr_b32 s54, s53, 6
s_add_u32 s54, s50, s54
s_mul_i32 s50, s54, 1280
s_add_u32 s50, s50, s52
s_lshl_b32 s51, s52, 1
s_add_u32 s51, s51, {MOD2}
s_add_u32 s22, s51, 5120
s_mov_b32 s23, {PFL}
s_mul_i32 s12, s3, 2304
s_add_u32 s12, s12, {MV}
s_add_u32 s13, s49, {XR}
s_lshl_b32 s14, s53, 11
s_add_u32 s14, s14, {STATS}
s_mul_i32 s61, s3, 40
s_add_u32 s61, s61, {OST}""")
a_(f"""s_cmp_eq_u32 s{sCG}, 6
s_cselect_b32 s16, 0x80, 0
s_cselect_b32 s17, 16, 24
s_mov_b32 s37, 2368
s_mov_b32 s38, 1088""")
for n in range(3):
    if n: a_(f"v_add_u32 v30, {64*n}, v1")
    a_(f"""v_mul_u32_u24 v31, 5462, v{30 if n else 1}
v_lshrrev_b32 v31, 16, v31
v_mad_u32_u24 v32, v31, s37, v36
v_mad_u32_u24 v33, v31, s38, v36
v_lshlrev_b32 v31, 2, v31
v_and_b32 v34, s16, v32
v_bitop3_b32 v33, v33, v31, 32 bitop3:0x78
v_lshl_or_b32 v{235+n}, v34, 23, v32
v_lshl_or_b32 v{232+n}, v34, 23, v33""")
a_(FS2); A += st3_addr()
a_(f"""s_mul_i32 s37, s{sCG}, 192
s_mul_i32 s48, s3, 20480
s_add_u32 s48, s48, s37
s_mul_i32 s39, s3, 3072
s_lshl_b32 s18, s{sRB3}, 11
s_lshl_b32 s37, s{sCG}, 8
s_add_u32 s18, s18, s37
s_lshl_b32 s37, s3, 6
s_add_u32 s18, s18, s37
s_add_u32 s18, s18, {CROW}""")
A += [f"v_accvgpr_write_b32 a{232+k}, -1" for k in range(4)]
FS = [S3.split("\n")[k] for k in (0, 3)] + S3.split("\n")[4:]
CSTM = 28672
TAGC = f"s_mul_i32 s{sTAG}, s{sE}, 0x9E3779B1\ns_add_u32 s{sTAG}, s{sTAG}, 0x85EBCA6B\nv_and_b32 v33, 3, v1\nv_lshlrev_b32 v33, 3, v33\nv_lshrrev_b32 v19, v33, s{sTAG}\nv_and_b32 v19, 0xff, v19\n" + "\n".join(f"v_mov_b32 v{240+k}, s{19 if k == 1 else sTAG}" for k in range(4))
def silu4():
    g("v_lshlrev_b32 v44, 16, v40\nv_and_b32 v45, 0xffff0000, v40\nv_lshlrev_b32 v46, 16, v41\nv_and_b32 v47, 0xffff0000, v41")
    for k in range(4): g(f"v_mul_f32 v{48+k}, 0xbfb8aa3b, v{44+k}")
    for k in range(4): g(f"v_exp_f32 v{48+k}, v{48+k}")
    for k in range(4): g(f"v_add_f32 v{48+k}, 1.0, v{48+k}")
    for k in range(4): g(f"v_rcp_f32 v{48+k}, v{48+k}")
    for k in range(4): g(f"v_mul_f32 v{44+k}, v{44+k}, v{48+k}")
    g("v_cvt_pk_bf16_f32 v40, v44, v45\nv_cvt_pk_bf16_f32 v41, v46, v47")
def swz_tr(dst):
    g(f"""v_bfe_u32 v32, v1, 2, 2
v_lshrrev_b32 v33, 1, v32
v_and_b32 v34, 1, v3
v_lshl_or_b32 v33, v34, 1, v33
v_xor_b32 v33, s3, v33
v_and_b32 v34, 3, v1
v_lshlrev_b32 v34, 3, v34
v_lshl_add_u32 v33, v33, 5, v34
v_lshl_add_u32 v32, v3, 3, v32
v_lshl_add_u32 v{dst}, v32, 7, v33""")
def procM_pre():
    swz_tr(35)
    g(f"""s_lshl_b32 s22, s50, 8
s_lshl_b32 s23, s3, 6
s_add_u32 s22, s22, s23
s_add_u32 s22, s22, {PUB1}
s_lshl_b32 s55, s3, 9
s_add_u32 s55, s55, {CSTM}
v_add_u32 v39, s55, v39
v_lshl_add_u32 v37, v3, 4, s55
v_lshlrev_b32 v38, 2, v1
s_cmp_lt_u32 s{sR}, 220
s_cselect_b32 s55, 16, 0
v_cmp_gt_u32 vcc, s55, v1
s_mov_b32 s54, 0xffffff00""")
    g.wait(vm="c")
    g("v_cndmask_b32 v38, v255, v38, vcc")
    silu4()
    g("ds_write_b64 v39, v[40:41]\ns_waitcnt lgkmcnt(0)")
    for ks in range(7): g.lg(f"ds_read_b128 {vr(200+4*ks,4)}, v37 offset:{64*ks}", "z")
def proc(role):
    g.wait(vm=["W", "E"])
    g(f"v_readfirstlane_b32 s{sE}, v42")
    TS("Wland")
    if role == "M":
        g("s_barrier")
        for ks in range(7):
            for hh in range(2): g.lg(f"ds_read_b64_tr_b16 {vr(60+4*ks+2*hh,2)}, v35 offset:{4096*ks+512*hh}", f"m{ks}")
        g(TAGC)
        for ks in range(7):
            g.wait(lg=f"m{ks}")
            g(f"v_mfma_f32_16x16x32_bf16 v[56:59], {vr(200+4*ks,4)}, {vr(60+4*ks,4)}, {'v[56:59]' if ks else 0}")
        g("v_and_or_b32 v56, v56, s54, v19")
        g.vm(f"buffer_store_dword v56, v38, {srd(sWS)}, s22 offen sc1", "ws")
    else:
        g("s_waitcnt lgkmcnt(0)\ns_barrier")
        for e in range(4):
            for hh in range(2): g.lg(f"ds_read_b64_tr_b16 {vr(44+4*e+2*hh,2)}, v35 offset:{WST+40*e+7680*hh}", f"t{e}")
        g(TAGC)
        for e in range(4):
            g.wait(lg=f"t{e}")
            g.vm(f"buffer_store_dwordx4 {vr(44+4*e,4)}, v36, {srd(sWS)}, s51 offen offset:{1024*e} sc1", "ws")
    TS("wsiss")

def ln(i):
    o = [('wait', f"x{i}", None)]
    if DEV and f"xw{i}" in SETS[P["ts"]]: o.append(('s', f"{'s_memtime' if P['cyc'] else 's_memrealtime'} s[{64+2*SETS[P['ts']].index(f'xw{i}')}:{65+2*SETS[P['ts']].index(f'xw{i}')}]"))
    def a(t): o.extend(x.strip() for x in t.split("\n"))
    T = 100 + i*20
    a("s_mov_b32 s55, 0x3f803f80\nv_mov_b32 v20, 0\nv_mov_b32 v21, 0")
    for d in range(20): a(f"v_dot2c_f32_bf16 v20, s55, v{T+d}\nv_dot2c_f32_bf16 v21, v{T+d}, v{T+d}")
    a(f"v_and_b32 v25, 0xffff0000, v{T}\nv_and_b32 v27, 0xffff0000, v{T+1}")
    for r in (8, 4, 2, 1):
        a(f"v_add_f32_dpp v20, v20, v20 row_ror:{r} {DPP}\nv_add_f32_dpp v21, v21, v21 row_ror:{r} {DPP}")
        if r > 1: a(f"v_lshlrev_b32 v{24+ (8,4,2).index(r)*2}, 16, v{T+(8,4,2).index(r)}")
    a(f"""v_mul_f32 v20, 0x3acccccd, v20
v_mul_f32 v21, 0x3acccccd, v21
v_fma_f32 v21, -v20, v20, v21
v_max_f32 v21, 0, v21
v_add_f32 v21, 0x3727c5ac, v21
v_rsq_f32 v22, v21
v_and_b32 v29, 0xffff0000, v{T+2}
v_mul_f32 v23, -v20, v22""")
    if P["nrm"]:
        o[:] = [x for x in o if not (isinstance(x, str) and x.startswith(("v_and_b32", "v_lshlrev_b32", "v_mul_f32 v23")))]
        a("v_cvt_pk_bf16_f32 v22, v22, 0\nv_lshlrev_b32 v21, 16, v22\nv_mul_f32 v23, -v20, v21")
        for d in range(22):
            t = 24 + 2*(d % 4)
            if d < 20: a(f"v_dot2_f32_bf16 v{t}, v{T+d}, v22, v23\nv_dot2_f32_bf16 v{t+1}, v{T+d}, v21, v23")
            if d >= 2: a(f"v_cvt_pk_f16_f32 v{T+d-2}, v{24+2*((d-2)%4)}, v{25+2*((d-2)%4)}")
        return o
    for d in range(20):
        t = 24 + 2*(d % 4)
        if d >= 3: a(f"v_lshlrev_b32 v{t}, 16, v{T+d}\nv_and_b32 v{t+1}, 0xffff0000, v{T+d}")
        a(f"v_pk_fma_f32 v[{t}:{t+1}], v[{t}:{t+1}], v[22:23], v[22:23] op_sel:[0,0,1] op_sel_hi:[1,0,1]")
        if d >= 1: a(f"v_cvt_pk_f16_f32 v{T+d-1}, v{24+2*((d-1)%4)}, v{25+2*((d-1)%4)}")
    a(f"v_cvt_pk_f16_f32 v{T+19}, v30, v31")
    return o

GL = [f"buffer_load_dwordx4 {vr(40+4*p,4)}, v248, {srd(sWS)}, s{56+p} offen sc1" for p in range(3)] + \
     [f"buffer_load_dword v{52+p}, v249, {srd(sWS)}, s{56+p} offen sc1" for p in range(3)]
FL = f"buffer_load_dword v71, v247, {srd(sWS)}, s60 offen sc1"
def gather_check():
    for k in range(12): g(f"v_xor_b32 v{40+k}, s{12+k%4}, v{40+k}")
    for k in range(3): g(f"v_xor_b32 v{52+k}, v19, v{52+k}")
    g("v_or3_b32 v64, v40, v41, v42\nv_or3_b32 v65, v43, v44, v45")
    for k in range(4): g(f"v_or3_b32 v{64+(k&1)}, v{64+(k&1)}, v{46+2*k}, v{47+2*k}")
    g("v_or3_b32 v64, v64, v65, v54\nv_and_b32 v64, 0xff, v64\nv_cmp_ne_u32 vcc, 0, v64")
def retry(lab, loads, check):
    global save
    g(f"s_cbranch_vccnz {lab}_retry\n{lab}_ok:")
    save = g.l; g.l = []
    g(f"{lab}_retry:\n" + "\n".join(loads) + "\ns_waitcnt vmcnt(0)"); check(); spin(f"{lab}_retry", f"{lab}_ok"); g(f"s_branch {lab}_ok")
    ool.append(g.l); g.l = save
def wo_dma(n):
    out = []
    for k in range(3):
        out.append(([('s', f"s_add_u32 m0, s39, {n*12288}")] if k == 0 else []) +
                   [('vm', f"buffer_load_dwordx4 v{232+k}, {srd(sWO)}, s48 offen offset:{1024*k} lds", "wo")] +
                   ([('s', "s_add_u32 s48, s48, 81920")] if k == 2 else []))
    return out
PZ = [[('vm', f"buffer_store_dwordx4 a[232:235], v{11+n}, {srd(sWS)}, s{sOB} offen sc1", "pz")] for n in range(4)] + [[('vm', f"buffer_store_dwordx4 a[232:235], v246, {srd(sWS)}, s18 offen sc1", "pz")]]
cnt = lambda r, ch: sum(st[1].split("@")[0].count(ch) for st in SCHED[r][1] if len(st) > 1)
WOPRE, PZPRE = cnt("W", "o"), cnt("W", "z")
assert WOPRE == cnt("M", "o") and PZPRE == cnt("M", "z") and WOPRE <= 4
def body(role, q):
    nwo = 0
    g.vmq[:] = q; g.lgq[:] = []
    for st in SCHED[role][1]:
        op = st[0]; ld = st[1] if len(st) > 1 else ""
        lo, hi = 2, 100
        if "@" in ld:
            ld, r = ld.split("@"); lo, hi = map(int, r.split("-"))
        gr = []
        for ch in ld:
            if ch == "o": gr += wo_dma(nwo); nwo += 1
            elif ch in "abcde": gr += xl("abcde".index(ch))[:3]
            elif ch in "ABCDE": gr += xl("ABCDE".index(ch))[3:]
            elif ch == "z": gr += [list(x) for x in PZ]
            else: gr += [[('vm', t, "ga")] for t in GL] if ch == "G" else [[('vm', FL, "fg")]] if ch == "f" else xl(int(ch))
        if op == "A":
            if role == "W":
                sprinkle(A, gr, lo/100, hi/100)
                g(f"s_cmp_ge_u32 s{sR}, 160\ns_cbranch_scc1 L_bodyM")
                sprinkle(AW, [])
            else:
                n0 = len(g.l); emit(gr); del g.l[n0:]
                procM_pre()
            TS("addr")
        elif op == "P":
            proc(role); emit(gr)
            if role == "M": TS("p1done")
        elif op == "B": g("s_barrier"); emit(gr)
        elif op == "N": emit(gr)
        elif op == "F":
            g.wait(vm="ws")
            g.vm(f"buffer_store_dwordx4 v[240:243], v246, {srd(sWS)}, s53 offen sc1", "fl")
            TS("p1done"); emit(gr)
        else:
            L = ln(int(op[1])); k = len(L)*P["flpos"]//100
            L = L[:k] if op[2:] == "a" else L[k:] if op[2:] == "b" else L
            sprinkle(L, gr, lo/100, hi/100)
            if op[2:] != "a": TS(f"ln{op[1]}")
    g.vmq[:] = g.vmq[g.vmq.index("ga"):]
    assert "x4" not in g.vmq
    return list(g.vmq)
PRE4 = any(st[0].startswith("L4") for st in SCHED["W"][1])
assert SCHED["W"][1][0] == SCHED["M"][1][0] and (len(SCHED["W"][1][0]) == 1 or SCHED["W"][0].replace("D", "") == SCHED["M"][0].replace("D", ""))
print("A instrs", len(A))
assert PRE4 == any(st[0].startswith("L4") for st in SCHED["M"][1])
save = g.l; g.l = []
g("L_bodyM:"); qe = body("M", qM); g("s_branch L_bodyj")
ool.append(g.l); g.l = save
assert qe == body("W", qW)
g("L_bodyj:")
g(f"s_and_b32 s12, s{sTAG}, 0xff\ns_bfe_u32 s13, s{sTAG}, 0x80008\ns_bfe_u32 s14, s{sTAG}, 0x80010\ns_lshr_b32 s15, s{sTAG}, 24")
TS("ln3done")
g.wait(vm="ga")
gather_check()
retry("L_ga", GL, gather_check)
g("""v_pk_add_f32 v[40:41], v[40:41], v[44:45]
v_pk_add_f32 v[42:43], v[42:43], v[46:47]
v_add_f32 v52, v52, v53
v_pk_add_f32 v[40:41], v[40:41], v[48:49]
v_pk_add_f32 v[42:43], v[42:43], v[50:51]
v_add_f32 v52, v52, v54""")
for rep in range(2):
    g("v_cvt_pk_bf16_f32 v44, v40, v41\nv_cvt_pk_bf16_f32 v45, v42, v43\nv_cvt_pk_bf16_f32 v52, v52, v52")
    g("v_lshlrev_b32 v40, 16, v44\nv_and_b32 v41, 0xffff0000, v44\nv_lshlrev_b32 v42, 16, v45\nv_and_b32 v43, 0xffff0000, v45\nv_lshlrev_b32 v52, 16, v52")
    if rep == 0: g("v_pk_add_f32 v[40:41], v[40:41], v[252:253] op_sel_hi:[1,0]\nv_pk_add_f32 v[42:43], v[42:43], v[252:253] op_sel_hi:[1,0]\nv_add_f32 v52, v52, v252")
g.lg("ds_write_b128 v251, v[40:43]", "gsw"); g.lg("ds_write_b32 v250, v52", "gsw")
g.wait(vm="fg")
fcheck = lambda: g(f"v_cmp_ne_u32 vcc, s{sTAG}, v71")
fcheck()
retry("L_fg", [FL], fcheck)
g.wait(lg="*"); g("s_barrier")
TS("gathered")
if P["nold"] & 1: g("v_mov_b32 v5, v255\nv_mov_b32 v6, v255")
if P["nold"] & 2: g("v_mov_b32 v232, v255\nv_mov_b32 v233, v255\nv_mov_b32 v234, v255")
wq = []
WF = " sc1" if P["wsc1"] else ""
for ks in range(20):
    b = 40 + (ks % 12)*16
    for t in range(4):
        wq.append([('vm', f"buffer_load_dwordx4 {ar(b+4*t,4)}, v{6 if t==3 else 5}, {srd(sWS)}, s59 offen offset:{256*t}{WF}", f"w{ks}")] + ([('s', "s_add_u32 s59, s59, 16384")] if t == 3 else []))
def gs_reads(c):
    return [('lg', f"ds_read_b128 {vr(200+4*k,4)}, v10 offset:{c*512 + (2560 if k < 2 else 0) + 16*(k&1)}", "gs") for k in range(4)]
def modul(c):
    out = []
    for i in range(5):
        T = 100 + (i*5+c)*4; o = 220 + 4*(i & 1)
        for d in range(4):
            f = 216 + 2*(d & 1)
            out += [f"v_fma_mix_f32 v{f}, v{T+d}, v{200+2*d}, v{208+2*d} op_sel:[0,0,0] op_sel_hi:[1,0,0]",
                    f"v_fma_mix_f32 v{f+1}, v{T+d}, v{201+2*d}, v{209+2*d} op_sel:[1,0,0] op_sel_hi:[1,0,0]",
                    f"v_cvt_pk_bf16_f32 v{o+d}, v{f}, v{f+1}"]
            w = 4//(P["wsplit"] if c else 1)
            if (d+1) % w == 0:
                out.append(('lg', f"ds_write_b{32*w} v{HW[i]}, {vr(o+d+1-w,w)} offset:{(c%3)*20480+4*(d+1-w)}", f"hw{c}"))
    return out
def a_reads(ks):
    return [('lg', f"ds_read_b128 {ar((ks&1)*20+4*i,4)}, v{((8,9),(4,251))[ks>=12][ks&1]} offset:{(ks%12)*5120+i*1024}", f"a{ks}") for i in range(5)]
M0 = modul(0)
L4 = ln(4)
B = gs_reads(0) + L4[:44] + [('wait', None, "gs")] + M0[:52] + L4[44:] + M0[52:] + gs_reads(1)
if PRE4: B = gs_reads(0) + [FS.pop(0) for _ in range(5)] + [('wait', None, "gs")] + M0 + gs_reads(1)
sprinkle(B, [wq.pop(0) for _ in range(P["lead"])], 0.0, 1.0)
TS("mod0")
for _ in range(12): g(FS.pop(0))
g.wait(lg="hw0"); g("s_barrier")
for it in a_reads(0): g.item(it)
while FS: g(FS.pop(0))
TS("mfma0")

acc = lambda t, i: 20 + (i*4+t)*4
AK, BQ, VV, VT, CC, CP, MP, SEL, ONE = 100, 120, 140, 152, 164, 168, 172, 174, 176
NEG = f2u(-1e30)
def attn_consts():
    o = ["v_lshlrev_b32 v181, 2, v3", "v_sub_u32 v181, v2, v181", f"v_mov_b32 v{CP}, 0xf0000000"]
    for r in range(4):
        o += [f"v_subrev_u32 v182, {r}, v181", "v_bfe_i32 v182, v182, 3, 1", f"v_and_b32 v{CC+r}, v{CP}, v182", f"v_mov_b32 v{ONE+r}, 0x3f803f80"]
    o += ["v_and_b32 v181, 1, v1", "v_lshlrev_b32 v181, 4, v181", "v_mov_b32 v182, 0x3f80", "v_lshlrev_b32 v182, v181, v182",
          "v_and_b32 v181, 0x32, v1", "v_cmp_eq_u32 vcc, 0x30, v181", "v_cmp_eq_u32 s[62:63], 50, v181", "v_mul_u32_u24 v229, 176, v2",
          f"v_cndmask_b32 v{SEL}, 0, v182, vcc", f"v_cndmask_b32 v{SEL+1}, 0, v182, s[62:63]"]
    for i in range(5): o += [f"v_mov_b32 v{BQ+4*i+2}, 0", f"v_mov_b32 v{BQ+4*i+3}, 0"]
    o += ["v_add_u32 v229, s61, v229", "v_lshl_add_u32 v228, v3, 3, v229"]
    return o
xq = []
pz0 = P["pz0"]
PFK = 3 if PZPRE else 15
if not PZPRE: xq += [(pz0+n, gr) for n, gr in enumerate(PZ)]
xq.append((PFK, [('vm', f"buffer_store_dwordx4 v[240:243], v246, {srd(sWS)}, s100 offen sc1", "pf2")]))
for n, k0 in enumerate((0, 0, 0, 0, 3, 3, 7, 11, 11, 15)):
    if n >= WOPRE: xq += [(max(k0, P["wo0"]), gr) for gr in wo_dma(n)]
for k in range(3):
    xq.append((15, ([('s', f"s_add_u32 m0, s49, {XR}")] if k == 0 else []) + [('vm', f"buffer_load_dwordx4 v{235+k}, {srd(sX)}, s50 offen offset:{1024*k} lds", "xr")]))
MVL = [f"buffer_load_dwordx2 v[194:195], v231, {srd(sWS)}, s23 offen sc1", f"buffer_load_dwordx4 v[240:243], v238, {srd(sWS)}, s51 offen sc1",
       f"buffer_load_dwordx4 v[190:193], v238, {srd(sWS)}, s22 offen sc1", f"buffer_load_dwordx2 v[244:245], v239, {srd(sWR)}, s52 offen"]
xq += [(20, [('vm', t, "mv")]) for t in MVL]
if P["stpre"]: xq.append((20, [('vm', f"buffer_load_dword v196, v197, {srd(sWS)}, s14 offen sc1", "mv")]))
carry = [(0, it) for it in modul(1)]
for c in (2, 3, 4):
    m0 = (c-1)*P["mpace"]
    carry += [(0, it) for it in gs_reads(c)]
    if c == 2: carry += [(0, it) for it in ["v_add_u32 v4, 61440, v8", "v_add_u32 v251, 61440, v9"]]
    if c == 3: carry += [(0, f"v_add_u32 v{r}, 61440, v{r}") for r in HW]
    carry += [(0, ("gapwait", 4)), (m0, ('wait', None, "gs"))] + [(m0, it) for it in modul(c)]
B0, B1, B2, B3, L16, MVR, XRB, XRL, L4 = 249, 252, 253, 254, 7, 247, 248, 250, 0
st3b = f"""v_bfe_u32 v228, v1, 2, 2
v_lshl_add_u32 v228, v3, 3, v228
v_mul_u32_u24 v228, 192, v228
v_and_b32 v229, 3, v1
v_lshl_add_u32 v228, v229, 3, v228
v_and_b32 v229, 1, v3
v_lshl_add_u32 v{B0}, v229, 5, v228
v_xor_b32 v229, 1, v229
v_lshl_add_u32 v{B1}, v229, 5, v228
v_add_u32 v{B2}, 61440, v{B0}
v_add_u32 v{B3}, 61440, v{B1}
v_lshlrev_b32 v{L16}, 4, v1
v_lshl_add_u32 v{MVR}, v3, 4, s12
v_mul_u32_u24 v228, 192, v2
v_lshl_add_u32 v228, v3, 3, v228
v_add_u32 v{XRB}, s13, v228
v_add_u32 v{XRL}, s13, v{L16}
v_lshlrev_b32 v{L4}, 2, v1
v_add_u32 v198, s12, v{L16}
v_min_u32 v197, 13, v1
v_lshlrev_b32 v197, 7, v197""".split("\n")
k_ = [n for n, x in enumerate(carry) if x[1] == "v_add_u32 v4, 61440, v8"][0]
carry[k_:k_] = [(0, it) for it in st3b[:9]]
def btr(dst, ks, j, tag):
    base = ((B0, B1), (B2, B3))[ks >= 10][j & 1]
    return [('lg', f"ds_read_b64_tr_b16 {dst(2*hh)}, v{base} offset:{(ks%10)*6144 + hh*768 + (j & ~1)*32}", tag) for hh in range(2)]
BA = [168 + 4*k for k in range(22)] + [40 + 4*k for k in range(32)] + [4*k for k in range(6)]
NBP = min(P["nbp"], 6*WOPRE) if PZPRE else 0
bq = []
for f in range(NBP): bq += [(12 if f < 22 else 13, it) for it in btr(lambda o: ar(BA[f]+o, 2), f//3, f % 3, "bp")]
carry += [(0, it) for it in st3b[9:] + attn_consts()]
def kwait(ks):
    ph = ks & 3
    o = [('wait', [f"w{ks}"] + (["pz"] if ks == PFK else []), [f"a{ks}", f"hw{(ks+1)//4}"] + (["gs"] if ks == 0 else []))]
    if ph == 3: o.append(('s', "s_barrier"))
    return o
for it in kwait(0): g.item(it)
loop0 = len(g.l)
credit = 0
for ks in range(20):
    c = ks >> 2; ph = ks & 3
    wb = 40 + (ks % 12)*16; ab = (ks & 1)*20
    mf = []
    for i in range(5):
        for t in range(4):
            A, B = (ar(ab+4*i, 4), ar(wb+4*t, 4)) if t == 2 else (ar(wb+4*t, 4), ar(ab+4*i, 4))
            d = vr(acc(t, i), 4)
            mf.append(f"v_mfma_f32_16x16x32_bf16 {d}, {A}, {B}, {d if ks else 0}")
    if ks == 19: break
    mem = {}
    for j, it in zip((0, 2, 3, 4, 6), a_reads(ks+1)): mem[j] = [it]
    credit += P["vpk"]
    slots = [1, 5, 9, 13, 17]
    pri = [e for e in xq if e[0] <= ks and e[1][-1][-1] in ("pz", "pf2")][:1]
    for j in slots:
        if credit < 10: break
        if pri and j == 9: e = pri.pop(); xq.remove(e); mem[j] = e[1]
        elif wq and int(wq[0][0][2][1:]) - ks < 12 and (int(wq[0][0][2][1:]) - ks <= P["maxlead"] or not [e for e in xq if e[0] <= ks and e not in pri]): mem[j] = wq.pop(0)
        else:
            c_ = [e for e in xq if e[0] <= ks and e[1][-1][-1] not in ("pz", "pf2")]
            if not c_: continue
            xq.remove(c_[0]); mem[j] = c_[0][1]
        credit -= 10
    for j in (7, 8, 10, 11, 14, 15, 18, 12, 16)[:P["bpk"] if ks >= 15 else P["bpk0"]]:
        if bq and bq[0][0] <= ks: mem[j] = [bq.pop(0)[1]]
    credit = min(credit, 15)
    assert not wq or int(wq[0][0][2][1:]) > ks + 1
    va = list(carry)
    TS(f"k{ks}")
    carry = gaps(g, mf, mem, va, None, kwait(ks+1) if ks < 19 else None, P['wgap'], P['wdep'], FS, P['vmsolo'] <= ks)
    if ks == 5: assert not FS, len(FS)
    if ph == 2: assert not [x for x in carry if x[1][-1] == f"hw{c+1}"], ks
    if ks == 10: assert not [x for x in carry if "v251" in x[1]]
    mk = P["mpace"]
    carry = [(max(0, m - 20), it) for m, it in carry]
assert not carry
assert not wq and not bq, len(bq)
if P["drop"]:
    pf = tuple(p for b, p in ((1, "buffer_load_dwordx4 a"), (2, "ds_write"), (4, "v_fma_mix"), (4, "v_cvt"), (8, "s_barrier"), (16, "ds_read"), (32, "s_waitcnt"), (64, "buffer_store_dwordx4 a")) if P["drop"] & b)
    g.l[loop0:] = [x for x in g.l[loop0:] if not x.startswith(pf)]
print("qkv slot overflow", g.over)
TS("qkvend")
dq = [e[1] for e in xq]
print('left for attention:', len(dq))
att = list(mf)
R5 = range(5)
cvt = lambda d, s: [f"v_cvt_pk_bf16_f32 v{d}, v{s}, v{s+1}", f"v_cvt_pk_bf16_f32 v{d+1}, v{s+2}, v{s+3}"]
MX = 180
SC = f2u(20**-0.5*math.log2(math.e))
g(f"s_mov_b32 s62, {SC}\ns_mov_b32 s63, {SC}\ns_mov_b32 s36, 0\ns_mov_b32 s37, 0x00ff00ff")
for i in R5:
    att += cvt(AK+4*i+2, acc(3, i)) + cvt(AK+4*i, acc(1, i)) + cvt(BQ+4*i, acc(0, i))
    att += [f"v_permlane32_swap_b32 v{BQ+4*i+2}, v{AK+4*i+2}", f"v_permlane32_swap_b32 v{BQ+4*i+3}, v{AK+4*i+3}"] + cvt(VV+2+2*i, acc(2, i))
    att.append(f"v_mfma_f32_16x16x32_bf16 {vr(acc(1,i),4)}, {vr(AK+4*i,4)}, {vr(BQ+4*i,4)}, {vr(CC,4)}")
    if i: att.append(f"v_mfma_f32_16x16x32_bf16 {vr(acc(0,i),4)}, {vr(AK+4*i-4,4)}, {vr(BQ+4*i,4)}, {vr(CC,4)}")
    att.append(f"v_mfma_f32_16x16x16_bf16 {vr(acc(3,i),4)}, {vr(AK+4*i+2,2)}, {vr(SEL,2)}, 0")
    s = acc(1, i)
    att += [f"v_cndmask_b32 v{s+r}, v{s+r}, v{acc(0,i)+r if i else CP}, s[36:37]" for r in range(4)]
    att += [f"v_max3_f32 v{MX+i}, v{s}, v{s+1}, v{s+2}", f"v_max_f32 v{MX+i}, v{MX+i}, v{s+3}"]
    att += cvt(VT+2+2*i, acc(3, i))
att += [f"v_permlane32_swap_b32 v{MX}, v{MX+2}", f"v_permlane32_swap_b32 v{MX+1}, v{MX+3}", f"v_max_f32 v{MX}, v{MX}, v{MX+2}", f"v_max_f32 v{MX+1}, v{MX+1}, v{MX+3}",
        f"v_permlane16_swap_b32 v{MX}, v{MX+1}", f"v_max_f32 v{MX+1}, v{MX}, v{MX+1}", f"v_mul_f32 v{MX}, s62, v{MX+1}", f"v_mul_f32 v{MX+2}, s62, v{MX+1}",
        f"v_permlane32_swap_b32 v{MX}, v{MX+2}", f"v_mov_b32 v{MX+1}, v{MX}", f"v_mov_b32 v{MX+3}, v{MX+2}",
        f"v_permlane16_swap_b32 v{MX}, v{MX+1}", f"v_permlane16_swap_b32 v{MX+2}, v{MX+3}",
        f"v_mov_b32 v{MX+5}, v{MX+4}", f"v_permlane32_swap_b32 v{MX+4}, v{MX+5}", f"v_max_f32 v{MX+4}, v{MX+4}, v{MX+5}", f"v_mov_b32 v{MX+5}, v{MX+4}",
        f"v_permlane16_swap_b32 v{MX+4}, v{MX+5}", f"v_max_f32 v{MX+4}, v{MX+4}, v{MX+5}", f"v_mul_f32 v{MX+4}, s62, v{MX+4}"]
for i in R5:
    s = acc(1, i); p = acc(2, i); m = MX + (i & ~1); o = i & 1
    if P["attpk"] & 1: att += [f"v_pk_fma_f32 v[{s+h}:{s+h+1}], v[{s+h}:{s+h+1}], s[62:63], v[{m}:{m+1}] op_sel:[0,0,{o}] op_sel_hi:[1,0,{o}] neg_lo:[0,0,1] neg_hi:[0,0,1]" for h in (0, 2)]
    else: att += [f"v_fma_f32 v{s+r}, v{s+r}, s62, -v{MX+i}" for r in range(4)]
    att += [f"v_exp_f32 v{s+r}, v{s+r}" for r in range(4)]
    att += cvt(p+2, s)
    if i: att += [f"v_cndmask_b32 v{p}, 0, v{p+2}, s[36:37]", f"v_cndmask_b32 v{p+1}, 0, v{p+3}, s[36:37]", f"v_xor_b32 v{p+2}, v{p}, v{p+2}", f"v_xor_b32 v{p+3}, v{p+1}, v{p+3}"]
    if i:
        att += [f"v_mfma_f32_16x16x32_bf16 {vr(acc(3,i),4)}, {vr(ONE,4)}, {vr(p,4)}, 0", f"v_mfma_f32_16x16x32_bf16 {vr(acc(0,i),4)}, {vr(VV+2*i,4)}, {vr(p,4)}, 0",
                f"v_mfma_f32_16x16x32_bf16 {vr(acc(1,i),4)}, {vr(VT+2*i,4)}, {vr(p,4)}, 0"]
    else:
        att += [f"v_mfma_f32_16x16x16_bf16 {vr(acc(3,i),4)}, {vr(ONE,2)}, {vr(p+2,2)}, 0", f"v_mfma_f32_16x16x16_bf16 {vr(acc(0,i),4)}, {vr(VV+2,2)}, {vr(p+2,2)}, 0",
                f"v_mfma_f32_16x16x16_bf16 {vr(acc(1,i),4)}, {vr(VT+2,2)}, {vr(p+2,2)}, 0"]
    att.append(f"v_rcp_f32 v{acc(3,i)}, v{acc(3,i)}")
    for t in (0, 1):
        s = acc(t, i)
        if P["attpk"] & 2: att += [f"v_pk_mul_f32 v[{s+h}:{s+h+1}], v[{s+h}:{s+h+1}], {vr(acc(3,i),2)} op_sel_hi:[1,0]" for h in (0, 2)]
        else: att += [f"v_mul_f32 v{s+r}, v{s+r}, v{acc(3,i)}" for r in range(4)]
        att += cvt(s, s)
        att.append(('lg', f"ds_write_b64 v{229 if t else 228}, {vr(s,2)} offset:{i*16*176 + (32 if t else 0)}", "ow"))
att, est = listsched(att)
print("attention est cycles", est, "instrs", len(att))
step = max(1, min(P["astep"], (len(att) - 60)//max(1, len(dq) - 4) - 6)); nxt = 0
for n, it in enumerate(att):
    if n % (len(att)//4) == 0: TS(f"att{n//(len(att)//4)}")
    ism = isinstance(it, str) and it.startswith("v_mfma")
    go = dq and n >= nxt and (ism or n >= nxt + 6)
    if go:
        gr = dq.pop(0); k = [kind(x) for x in gr].index("M")
        for x in gr[:k]: g.item(x)
    g.item(it)
    if go:
        for x in gr[k:]: g.item(x)
        nxt = n + (4 if n < 30 else step)
assert not dq
g.wait(lg="*"); g("s_barrier")
TS("bar5")
for n in range(4): g.lg(f"ds_read_b128 {vr(20+4*n,4)}, v{15+n} offset:{256*n}", f"or{n}")
g(f"""s_mul_i32 s56, s53, 20480
s_add_u32 s56, s56, {OPP}
s_add_u32 s57, s56, 4096
s_add_u32 s58, s56, 8192
s_add_u32 s59, s56, 12288
s_add_u32 s60, s56, 16384
s_mov_b32 s55, 0x05040100""")
oload = lambda ks: f"buffer_load_dwordx4 {vr(100+4*ks,4)}, v{L16}, {srd(sWS)}, s{56+ks//4} offen offset:{(ks%4)*1024} sc1"
def mv_check():
    for b in (240, 190):
        g(f"v_perm_b32 v36, v{b+1}, v{b}, s55\nv_perm_b32 v37, v{b+3}, v{b+2}, s55\nv_xor_b32 v36, s{sTAG}, v36\nv_xor_b32 v37, s{sTAG}, v37")
        g("v_or_b32 v38, v36, v37" if b == 240 else "v_or3_b32 v38, v38, v36, v37")
    g(f"v_and_b32 v38, v38, v230\nv_xor_b32 v37, s{sTAG}, v194\nv_or_b32 v38, v38, v37\nv_cmp_ne_u32 vcc, 0, v38")
if P["mve"]:
    g.wait(vm=["wo", "mv", "xr"]); mv_check()
for n in range(4):
    g.wait(lg=f"or{n}")
    g.vm(f"buffer_store_dwordx4 {vr(20+4*n,4)}, v{11+n}, {srd(sWS)}, s{sOB} offen sc1", "os")
TS("ostored")
if not P["mve"]:
    g.wait(vm=["wo", "mv", "xr"]); mv_check()
g("s_barrier")
TS("bar6")
retry("L_mv", MVL[:3], mv_check)
TS("mvok")
pl = ["v_cmp_ne_u32 vcc, s19, v195"]
for b in (240, 190): pl += [f"v_and_b32 v{b+k}, 0xffff0000, v{b+k}" for k in range(4)]
pl += f"""s_lshr_b32 s15, vcc_lo, 16
v_lshlrev_b32 v40, 16, v244
v_and_b32 v41, 0xffff0000, v244
v_lshlrev_b32 v42, 16, v245
v_and_b32 v43, 0xffff0000, v245
v_pk_mul_f32 v[40:41], v[40:41], v[190:191]
v_pk_mul_f32 v[42:43], v[42:43], v[192:193]""".split("\n")
for x in pl: g(x)
g("s_mov_b32 exec_hi, 0xffff")
g.lg("ds_write_b128 v198, v[40:43] offset:1536", "mw"); g.lg("ds_write_b128 v198, v[240:243]", "mw"); g.lg("ds_write_b128 v198, v[190:193] offset:768", "mw")
g("s_mov_b32 exec_hi, -1")
pl = []
for j in range(6): pl.append(('lg', f"ds_read_b128 {vr(204+4*j,4)}, v{MVR} offset:{4*384+64*j}", "cc"))
for j in range(6): pl.append(('lg', f"ds_read_b64 {vr(80+2*j,2)}, v{XRB} offset:{32*j}", "cc"))
for ks in range(20):
    for j in range(3):
        if ks*3+j >= NBP: pl += btr(lambda o: ar(BA[ks*3+j]+o, 2), ks, j, "bp")
for j in range(3): pl += btr(lambda o: vr(44+4*j+o, 2), 0, 3+j, "b0")
pl += [('wait', None, "cc"), "v_pk_add_f32 v[94:95], v[204:205], v[206:207]"] + [f"v_pk_add_f32 v[94:95], v[94:95], v[{204+2*k}:{205+2*k}]" for k in range(2, 12)] + ["v_add_f32 v95, v94, v95"]
NO = P["no"]; od = P["odelay"]; oi = 0
for n, it in enumerate(pl):
    while oi < NO and n >= od + oi*P["ostep"]:
        g.vm(oload(oi), f"o{oi//2}"); oi += 1
        if oi == 1: TS("oiss")
    g.item(it)
while oi < NO:
    g.vm(oload(oi), f"o{oi//2}"); oi += 1
TS("plend")
xun = []
for k in range(12): xun += [f"v_lshlrev_b32 v{68+2*k}, 16, v{80+k}", f"v_and_b32 v{69+2*k}, 0xffff0000, v{80+k}"]
def ocheck(n):
    b = 100 + 8*n
    return [f"v_max3_u32 v92, v{b}, v{b+1}, v{b+2}", f"v_max3_u32 v93, v{b+3}, v{b+4}, v{b+5}", f"v_max3_u32 v92, v92, v{b+6}, v{b+7}", "v_max_u32 v92, v92, v93", "v_cmp_eq_u32 vcc, -1, v92"]
def obranch(n, hi):
    global save
    save = g.l; g.l = []
    g(f"L_o{n}_retry:\n" + "\n".join(oload(k) for k in range(2*n, hi)) + f"\ns_waitcnt vmcnt({hi-2*n-2})\n" + "\n".join(ocheck(n))); spin(f"L_o{n}_retry", f"L_o{n}_ok"); g(f"s_branch L_o{n}_ok")
    ool.append(g.l); g.l = save
    return ('s', f"s_cbranch_vccnz L_o{n}_retry\nL_o{n}_ok:")
g.wait(vm="o0", lg="bp")
for t in ocheck(0): g(t)
TS("o0chk")
g.item(obranch(0, oi))
for n in range(10):
    part = {2: ('wait', None, f"b{2*n}"), 8: ('wait', None, f"b{2*n+1}")}
    if n < 9:
        ch = [('wait', f"o{n+1}", None)] + ocheck(n+1) + [obranch(n+1, min(20, oi+2))]
        for k, it in zip((3, 4, 5, 6, 7, 9, 11), ch): part[k] = it
    for k in (0, 1):
        if oi < 20: part[k] = ('vm', oload(oi), f"o{oi//2}"); oi += 1
    for k in range(12):
        if k not in part and xun: part[k] = xun.pop(0)
    assert oi >= min(20, 2*n + 4)
    for h in range(2):
        ks = 2*n + h
        sb = 44 + 12*(ks & 1); nb = 44 + 12*((ks+1) & 1)
        its = []
        if ks < 19:
            for j in range(3): its += btr(lambda o: vr(nb+4*j+o, 2), ks+1, 3+j, f"b{ks+1}")
        else: its = [('lg', f"ds_read_b128 {vr(180+4*j,4)}, v{MVR} offset:{64*j}", f"g{j}") for j in range(6)]
        for j in range(6):
            A = ar(BA[ks*3+j], 4) if j < 3 else vr(sb+4*(j-3), 4)
            d = vr(20+4*j, 4)
            g(f"v_mfma_f32_16x16x32_bf16 {d}, {A}, {vr(100+4*ks,4)}, {d if ks else 0}")
            if its: g.item(its[j])
            if 6*h + j in part: g.item(part[6*h + j])
    TS(f"o{n+1}")
for x in xun: g(x)
TS("woend")
pk = lambda b, k: f"v[{b+2*k}:{b+2*k+1}]"
g(f"""s_lshl_b32 s57, s{sCG}, 8
s_add_u32 s57, s57, s14
s_mov_b32 s55, 0xffffff00
s_cmp_eq_u32 s15, {0 if P['fast'] else 0x10000}""")
for k in range(12):
    if k % 4 == 0: g.wait(lg=f"g{k//2+1}")
    g(f"v_pk_fma_f32 {pk(20,k)}, {pk(20,k)}, {pk(180,k)}, {pk(68,k)}")
    if k == 1: g(f"v_pk_mul_f32 v[46:47], {pk(20,0)}, {pk(20,0)}\nv_pk_mul_f32 v[48:49], {pk(20,0)}, {pk(204,0)}")
    if k >= 2: g(f"v_pk_add_f32 v[44:45], {'v[44:45]' if k > 2 else pk(20,0)}, {pk(20,k-1)}\nv_pk_fma_f32 v[46:47], {pk(20,k-1)}, {pk(20,k-1)}, v[46:47]\nv_pk_fma_f32 v[48:49], {pk(20,k-1)}, {pk(204,k-1)}, v[48:49]")
g(f"""v_pk_fma_f32 v[48:49], {pk(20,11)}, {pk(204,11)}, v[48:49]
v_pk_add_f32 v[44:45], v[44:45], {pk(20,11)}
v_pk_fma_f32 v[46:47], {pk(20,11)}, {pk(20,11)}, v[46:47]
v_add_f32 v48, v48, v49
v_add_f32 v44, v44, v45
v_add_f32 v46, v46, v47
v_permlane32_swap_b32 v48, v95
v_permlane32_swap_b32 v44, v46
v_add_f32 v48, v48, v95
v_add_f32 v44, v44, v46
v_permlane16_swap_b32 v44, v48
v_add_f32 v44, v44, v48
v_and_or_b32 v44, v44, s55, v19
s_cbranch_scc0 L_st_slow
buffer_store_dword v44, v{L4}, {srd(sWS)}, s57 offen
L_st_j:""")
ool.append(["L_st_slow:", f"buffer_store_dword v44, v{L4}, {srd(sWS)}, s57 offen sc1", "s_branch L_st_j"])
TS("stpub")
def csent():
    g(f"""s_lshl_b32 s58, s{sCG}, 2
s_add_u32 s58, s58, s3
s_cmp_eq_u32 s58, 4
s_cbranch_scc0 L_nosent
s_lshl_b32 s58, s{sRB3}, 7
s_add_u32 s58, s58, {CS_}
v_mov_b32 v53, s{sTAG}
s_mov_b32 exec_hi, 0
buffer_store_dword v53, v{L4}, {srd(sWS)}, s58 offen sc1
s_mov_b32 exec_hi, -1
L_nosent:""")
if P["csp"] >= 0 and P["cpos"] == 0: csent()
for v, b in ((2, 100), (1, 124), (3, 148)):
    for j in range(6): g.lg(f"ds_read_b128 {vr(b+4*j,4)}, v{MVR} offset:{v*384+64*j}", "m2")
g(f"s_lshl_b32 s57, s3, 2\ns_add_u32 s57, s57, {AM}\nv_mov_b32 v54, s57\nv_and_b32 v55, 12, v{L4}\nv_add_u32 v55, {AM}, v55")
def st_check(j):
    for k in range(7): g(f"v_xor_b32 v{44+k}, v{180+8*j+k}, v19")
    g("v_or3_b32 v52, v44, v45, v46\nv_or3_b32 v53, v47, v48, v49\nv_or3_b32 v52, v52, v53, v50\nv_and_b32 v52, 0xff, v52\nv_cmp_ne_u32 vcc, 0, v52")
ppoll("L_st", P["stR"], lambda j: [f"buffer_load_dword v{180+8*j+k}, v{L4}, {srd(sWS)}, s14 offen offset:{256*k} sc1" for k in range(7)], st_check, P["stP"])
g.vmq[:] = []
TS("stok")
if P["csp"] >= 0 and P["cpos"] == 1: csent()
g(f"""v_pk_add_f32 v[44:45], v[44:45], v[46:47]
v_add_f32 v48, v48, v50
v_pk_add_f32 v[44:45], v[44:45], v[48:49]
v_add_f32 v46, v44, v45
v_add_f32 v44, v44, v45
v_permlane32_swap_b32 v44, v46
v_mov_b32 v45, v44
v_mov_b32 v47, v46
v_permlane16_swap_b32 v44, v45
v_permlane16_swap_b32 v46, v47
v_mul_f32 v44, 0x3acccccd, v44
v_mul_f32 v46, 0x3acccccd, v46
v_fma_f32 v46, -v44, v44, v46
v_fma_f32 v45, -v44, v47, v45
v_max_f32 v46, 0, v46
v_add_f32 v46, 0x3727c5ac, v46
v_rsq_f32 v48, v46
v_mul_f32 v45, v45, v48
v_mul_f32 v49, -v44, v48""")
nrm = [f"v_pk_fma_f32 {pk(68,k)}, {pk(20,k)}, v[48:49], v[48:49] op_sel:[0,0,1] op_sel_hi:[1,0,1]" for k in range(12)]
g(nrm.pop(0))
for r in (8, 4, 2, 1):
    g(f"v_max_f32_dpp v46, v{45 if r == 8 else 46}, v{45 if r == 8 else 46} row_ror:{r} {DPP}")
    if r > 1: g(nrm.pop(0)); g(nrm.pop(0))
g.lg("ds_write_b32 v54, v46", "am")
TS("amw")
for t in nrm: g(t)
g.wait(lg="*"); g("s_barrier")
TS("amb")
g.lg("ds_read_b32 v52, v55", "am")
for k in range(12): g(f"v_pk_fma_f32 {pk(68,k)}, {pk(68,k)}, {pk(100,k)}, {pk(124,k)}")
g.wait(lg="*")
g(f"""v_max_f32_dpp v53, v52, v52 quad_perm:[1,0,3,2] {DPP}
v_max_f32_dpp v53, v53, v53 quad_perm:[2,3,0,1] {DPP}
v_cmp_eq_f32 vcc, v53, v52
v_cmp_eq_f32 s[58:59], v53, v45
s_ff1_i32_b64 s57, vcc
s_and_b32 s57, s57, 3
s_cmp_eq_u32 s57, s3
s_cbranch_scc0 L_nowin
s_ff1_i32_b64 s57, s[58:59]
s_and_b32 s57, s57, 15
s_cmp_eq_u32 s{sCG}, 0
s_cbranch_scc0 L_nocand
s_lshl_b32 s58, s57, 1
s_add_u32 s58, s58, s54
v_mov_b32 v56, v53
v_mov_b32 v57, s58
v_mov_b32 v58, s{sTAG}
v_mov_b32 v59, s53
s_lshl_b32 s58, s{sRB3}, 7
s_add_u32 s58, s58, {CAND}
s_mov_b64 exec, 0xff
buffer_store_dwordx4 v[56:59], v{L16}, {srd(sWS)}, s58 offen sc1
L_nocand:
s_mov_b32 s58, 0x00010001
s_lshl_b32 exec_lo, s58, s57
s_lshl_b32 exec_hi, s58, s57
s_lshl_b32 s58, s{sRB3}, 11
s_lshl_b32 s59, s{sCG}, 8
s_add_u32 s58, s58, s59
s_lshl_b32 s59, s58, 1
s_add_u32 s58, s58, {CROW}
s_add_u32 s59, s59, {CBASE}
v_lshlrev_b32 v54, 3, v3
v_lshlrev_b32 v55, 4, v3""")
for j in range(6):
    g(f"v_cvt_pk_bf16_f32 v{172+2*(j%4)}, v{68+4*j}, v{69+4*j}\nv_cvt_pk_bf16_f32 v{173+2*(j%4)}, v{70+4*j}, v{71+4*j}")
    g(f"buffer_store_dwordx2 {vr(172+2*(j%4),2)}, v54, {srd(sWS)}, s58 offen offset:{32*j} sc1")
g(f"s_and_b32 s60, s{sTAG}, 0xff\ns_bfe_u32 s61, s{sTAG}, 0x80008\ns_bfe_u32 s62, s{sTAG}, 0x80010\ns_lshr_b32 s63, s{sTAG}, 24\nv_mov_b32 v60, s55")
for j in range(6):
    for h in range(2): g(f"v_pk_fma_f32 {pk(100,2*j+h)}, {pk(68,2*j+h)}, {pk(148,2*j+h)}, {pk(20,2*j+h)}")
    for r in range(4): g(f"v_and_or_b32 v{100+4*j+r}, v{100+4*j+r}, v60, s{60+r}")
    g(f"buffer_store_dwordx4 {vr(100+4*j,4)}, v55, {srd(sWS)}, s59 offen offset:{64*j} sc1")
g("s_mov_b64 exec, -1\ns_mul_i32 s57, s57, 12")
for k in range(3): g(f"v_subrev_u32 v56, s57, v1\nv_add_u32 v56, {64*k}, v56\nv_cmp_gt_u32 vcc, 12, v56\nv_cndmask_b32 v{235+k}, v{235+k}, v255, vcc")
g("L_nowin:")
TS("candpub")
for j in range(6):
    for h in range(2): g(f"v_pk_fma_f32 {pk(20,2*j+h)}, {pk(68,2*j+h)}, {pk(148,2*j+h)}, {pk(20,2*j+h)}")
    g(f"v_cvt_pk_bf16_f32 v{20+4*j}, v{20+4*j}, v{21+4*j}\nv_cvt_pk_bf16_f32 v{21+4*j}, v{22+4*j}, v{23+4*j}")
    g.lg(f"ds_write_b64 v{XRB}, {vr(20+4*j,2)} offset:{32*j}", "ow")
g.wait(lg="*")
for k in range(3): g.lg(f"ds_read_b128 {vr(44+4*k,4)}, v{XRL} offset:{1024*k}", f"r{k}")
for k in range(3):
    g.wait(lg=f"r{k}")
    g(f"buffer_store_dwordx4 {vr(44+4*k,4)}, v{235+k}, {srd(sOUT)}, s50 offen offset:{1024*k} sc1")
TS("mainend")
g("s_branch L_fin")
for b in ool: g.l += b
ool[:] = []

sWG, sWU, sWD = sX, sWQ, sPZ
CST = 100000 - 160
g(f"""L_svc:
s_sub_u32 s44, s2, 224
v_lshlrev_b32 v28, 3, v0
s_waitcnt lgkmcnt(0)
s_mov_b32 s{sWM}, s22
s_mov_b32 s{sWM+1}, s23
s_mov_b32 s{sC+2}, 1280
s_mov_b32 s{sC+3}, 0x20000
buffer_load_dwordx2 v[40:41], v28, {srd(sC)}, 0 offen
buffer_load_dword v42, v29, {srd(sWS)}, 0 offen sc1
s_load_dwordx2 s[{sWG}:{sWG+1}], s[0:1], 40
s_load_dwordx2 s[{sWU}:{sWU+1}], s[0:1], 48
s_load_dwordx2 s[{sWD}:{sWD+1}], s[0:1], 56
s_load_dwordx2 s[{sWO}:{sWO+1}], s[0:1], 16
s_load_dwordx2 s[{sWR}:{sWR+1}], s[0:1], 32
s_load_dwordx2 s[{sOUT}:{sOUT+1}], s[0:1], 80""")
for sr, sz in ((sWM, 4915200), (sWO, 819200), (sWR, 1280), (sOUT, 2621440), (sWG, 2211840), (sWU, 2211840), (sWD, 2211840)): g(f"s_mov_b32 s{sr+2}, {sz}\ns_mov_b32 s{sr+3}, 0x20000")
swz_tr(6)
g(f"""s_mov_b32 s{sSPIN}, 0
s_mov_b32 s{sPA}, 0x0c0c0400
s_mov_b32 s{sPB}, 0x04000c0c
v_add_u32 v7, 40960, v6
v_add_u32 v9, 81920, v6
v_add_u32 v10, 81920+40960, v6
s_mul_i32 s55, s3, 320
s_add_u32 s55, s55, 81920
v_mul_u32_u24 v32, 1280, v32
v_add3_u32 v11, v32, v34, s55
s_and_b32 s55, s3, 1
s_lshl_b32 s55, s55, 2
v_and_b32 v30, 1, v3
v_lshl_or_b32 v30, v30, 1, s55
v_and_b32 v31, 7, v1
v_xor_b32 v31, v30, v31
v_lshlrev_b32 v31, 4, v31
v_lshrrev_b32 v30, 3, v1
v_mad_u32_u24 v4, v30, 60, 0
v_lshl_add_u32 v4, v4, 7, v31
v_mad_u32_u24 v5, v30, 27, 0
v_lshl_add_u32 v5, v5, 7, v31
v_lshlrev_b32 v8, 4, v1
v_lshlrev_b32 v12, 2, v1
v_mov_b32 v255, {OOB}
s_waitcnt lgkmcnt(0)""")
def svc_silu(n):
    g(f"s_waitcnt vmcnt({n})\nv_readfirstlane_b32 s{sE}, v42")
    silu4()
    g(f"v_add_u32 v28, {CST}, v28\nds_write_b64 v28, v[40:41]\nv_lshlrev_b32 v28, 4, v3\nv_add_u32 v28, {CST}, v28")
    g(TAGC)
    g(f"v_and_b32 v30, 1, v1\nv_lshlrev_b32 v30, 4, v30\nv_lshrrev_b32 v13, v30, s{sTAG}\nv_and_b32 v13, 0xffff, v13\ns_waitcnt lgkmcnt(0)\ns_barrier")
    for ks in range(20): g(f"ds_read_b128 {vr(100+4*ks,4)}, v28 offset:{64*ks}")
    g("s_waitcnt lgkmcnt(0)\ns_barrier")
g.vmq[:] = []; g.lgq[:] = []
def tile_dma(half, sr, voff, s_src, step, tag, flags="nt"):
    g(f"s_add_u32 m0, s49, {half*81920}")
    for n in range(20):
        g.vm(f"buffer_load_dwordx4 v{voff}, {srd(sr)}, s{s_src} offen {flags} lds", tag)
        if n < 19: g(f"s_add_u32 m0, m0, 4096\ns_add_u32 s{s_src}, s{s_src}, {4*step}")
def tile_tr(half, dst):
    for ks in range(20):
        for hh in range(2):
            g(f"ds_read_b64_tr_b16 {dst(4*ks+2*hh)}, v{(6,9)[half] + (ks >= 10)} offset:{(ks%10)*4096+hh*512}")
def mod_src(sunit):
    g(f"s_lshl_b32 s50, s{sunit}, 7\ns_mul_i32 s55, s3, {8*7680}\ns_add_u32 s50, s50, s55\ns_add_u32 s50, s50, 2560")
def mod_consume(half, sunit):
    tile_tr(half, lambda o: vr(20+o, 2))
    g("s_waitcnt lgkmcnt(0)\ns_barrier")
    for ks in range(20): g(f"v_mfma_f32_16x16x32_bf16 v[180:183], {vr(100+4*ks,4)}, {vr(20+4*ks,4)}, {'v[180:183]' if ks else 0}")
    g(f"""s_sub_u32 s55, s{sunit}, 20
s_cmp_lt_u32 s55, 10
s_cselect_b32 s55, 1.0, 0
s_lshl_b32 s56, s{sunit}, 8
s_lshl_b32 s57, s3, 6
s_add_u32 s56, s56, s57
s_add_u32 s56, s56, {MOD2}
v_cvt_pk_bf16_f32 v180, v180, v180
v_lshlrev_b32 v180, 16, v180
v_add_f32 v180, s55, v180
v_cvt_pk_bf16_f32 v180, v180, v180
v_lshl_or_b32 v180, v180, 16, v13
s_mov_b64 exec, 0xffff""")
    g.vm(f"buffer_store_dword v180, v12, {srd(sWS)}, s56 offen sc1", "m2s")
    g("s_mov_b64 exec, -1")
def cand_poll(L):
    g(f"""v_and_b32 v30, 31, v1
v_lshlrev_b32 v30, 7, v30
s_mov_b32 s55, {CAND}
""")
    if P["csp"] >= 0:
        g(f"s_mov_b32 s57, {CS_}")
        ppoll(L + "s", 1, lambda j: [f"buffer_load_dword v69, v30, {srd(sWS)}, s57 offen sc1"], lambda j: g(f"v_cmp_ne_u32 vcc, s{sTAG}, v69"), 0)
        for _ in range(P["csp"]): g(f"buffer_load_dword v69, v30, {srd(sWS)}, s57 offen sc1\ns_waitcnt vmcnt(0)")
        TS("t2", True)
    def chk(j):
        b = 200 + 4*j
        g(f"v_cmp_ne_u32 vcc, s{sTAG}, v{b+2}\nv_mov_b32 v20, v{b}" + ("" if L == "L_m" else f"\nv_mov_b32 v21, v{b+1}\nv_mov_b32 v23, v{b+3}"))
    ppoll(L, P["cdR"], lambda j: [f"buffer_load_dwordx4 {vr(200+4*j,4)}, v30, {srd(sWS)}, s55 offen sc1"], chk, P["cdP"])
    g(f"""v_max_f32_dpp v24, v20, v20 row_ror:8 {DPP}
v_max_f32_dpp v24, v24, v24 row_ror:4 {DPP}
v_max_f32_dpp v24, v24, v24 row_ror:2 {DPP}
v_max_f32_dpp v24, v24, v24 row_ror:1 {DPP}
v_mov_b32 v25, v24
v_permlane16_swap_b32 v24, v25
v_max_f32 v24, v24, v25
v_cmp_eq_f32 vcc, v24, v20
s_ff1_i32_b64 s45, vcc
s_and_b32 s45, s45, 31""")
for _ in range(P["sdelay"]): g("s_sleep 8")
g("s_cmp_ge_u32 s44, 27\ns_cbranch_scc1 L_fz")
g(f"s_lshl_b32 s55, s44, 2\ns_add_u32 s55, s55, s3\ns_mul_i32 s55, s55, {60*128}\nv_lshlrev_b32 v33, 7, v1\ns_mov_b32 exec_hi, 0xfffffff\nbuffer_load_dword v184, v33, {srd(sWO)}, s55 offen\ns_mov_b32 exec_hi, -1")
mod_src(44); tile_dma(0, sWM, 4, 50, 8*7680, "t0")
svc_silu(21)
g(f"s_lshl_b32 s51, s44, 7\ns_mul_i32 s55, s3, {8*3456}\ns_add_u32 s51, s51, s55\ns_mov_b32 s52, s51")
tile_dma(1, sWG, 5, 51, 8*3456, "t1")
g.wait(vm="t0"); g("s_barrier")
mod_consume(0, 44)
TS("t0", True)
tile_dma(0, sWU, 5, 52, 8*3456, "t2")
g.wait(vm="t1"); g("s_barrier")
tile_tr(1, lambda o: ar(o, 2)); g("s_waitcnt lgkmcnt(0)\ns_barrier")
g("s_mul_i32 s51, s44, 81920\ns_add_u32 s51, s51, s49")
tile_dma(1, sWD, 8, 51, 1024, "t3")
g.wait(vm="t2"); g("s_barrier")
tile_tr(0, lambda o: ar(80+o, 2))
g("s_waitcnt vmcnt(0) lgkmcnt(0)\ns_barrier"); g.vmq[:] = []
for t in range(10):
    for ks in range(2):
        for hh in range(2): g(f"ds_read_b64_tr_b16 {ar(160+(t*2+ks)*4+2*hh,2)}, v11 offset:{ks*40960+hh*5120+t*32}")
g(f"""s_waitcnt lgkmcnt(0)
v_mov_b32 v20, 0
ds_write_b32 v12, v20 offset:8192
v_mul_u32_u24 v30, 5462, v1
v_lshrrev_b32 v30, 16, v30
v_lshl_add_u32 v14, v30, 6, v8
v_add_u32 v31, 64, v1
v_mul_u32_u24 v30, 5462, v31
v_lshrrev_b32 v30, 16, v30
v_lshlrev_b32 v31, 4, v31
v_lshl_add_u32 v15, v30, 6, v31
v_cmp_gt_u32 vcc, 16, v1
s_lshl_b32 s55, s3, 11
v_add_u32 v16, s55, v8
v_cndmask_b32 v15, v255, v15, vcc
v_lshl_add_u32 v17, v3, 4, s55
s_lshl_b32 s55, s3, 5
v_lshl_add_u32 v18, v2, 1, s55
v_lshrrev_b32 v30, 2, v2
v_lshlrev_b32 v31, 4, v3
v_add_u32 v32, 128, v31""")
for q in range(4): g(f"v_cmp_eq_u32 vcc, {q}, v30\nv_cndmask_b32 v{232+q}, v32, v31, vcc")
g(f"""v_lshrrev_b32 v30, 5, v1
v_and_b32 v31, 31, v1
v_lshlrev_b32 v31, 2, v31
v_lshl_add_u32 v236, v30, 12, v31
v_cmp_gt_u32 vcc, 32, v1
s_mul_i32 s46, s3, {5*4096}
s_lshl_b32 s55, s44, 7
s_add_u32 s46, s46, s55
s_add_u32 s46, s46, {YP}
v_cndmask_b32 v237, v255, v236, vcc
s_add_u32 s47, s46, 8192
s_add_u32 s48, s46, 16384
s_mov_b32 s54, 0xffffff00
v_cmp_gt_u32 vcc, 32, v0
s_lshl_b32 s53, s44, 7
s_add_u32 s53, s53, {YS}
v_cndmask_b32 v238, v255, v12, vcc
s_waitcnt lgkmcnt(0)
s_barrier""")
TS("ready", True)
cand_poll("L_m")
TS("cand", True)
g(f"""s_lshl_b32 s55, s45, 11
s_add_u32 s55, s55, {CROW}
L_m_rp:
buffer_load_dwordx4 v[20:23], v14, {srd(sWS)}, s55 offen sc1
buffer_load_dwordx4 v[24:27], v15, {srd(sWS)}, s55 offen sc1
s_waitcnt vmcnt(0)
ds_write_b128 v16, v[20:23]
ds_write_b128 v16, v[24:27] offset:1024
v_max3_u32 v28, v20, v21, v22
v_max3_u32 v29, v23, v24, v25
v_max3_u32 v28, v28, v26, v27
v_max_u32 v28, v28, v29
v_cmp_eq_u32 vcc, -1, v28""")
spin("L_m_rp", "L_m_rok")
g("L_m_rok:")
TS("row", True)
g.lgq[:] = []
for ks in range(6): g.lg(f"ds_read_b128 {vr(100+4*ks,4)}, v17 offset:{64*ks}", f"x{ks}")
mf = []; mem = {}; pre = {}
for ks in range(20):
    pre[2*ks] = [('wait', None, f"x{ks}")]
    mf += [f"v_mfma_f32_16x16x32_bf16 v[32:35], {vr(100+4*ks,4)}, {ar(4*ks,4)}, {'v[32:35]' if ks else 0}",
           f"v_mfma_f32_16x16x32_bf16 v[36:39], {vr(100+4*ks,4)}, {ar(80+4*ks,4)}, {'v[36:39]' if ks else 0}"]
    if ks + 6 < 20: mem[2*ks] = [('lg', f"ds_read_b128 {vr(100+4*(ks+6),4)}, v17 offset:{64*(ks+6)}", f"x{ks+6}")]
if P["ysp"] >= 0: mem[2*P["ysp"]+1] = [('vm', f"buffer_store_dword v240, v238, {srd(sWS)}, s53 offen sc1", "ys")]
gaps(g, mf, mem, [], pre)
silu(32, 33)
g("v_mul_f32 v32, v32, v36\nv_cvt_pk_bf16_f32 v32, v32, v32\nds_write_b16 v18, v32 offset:8192\ns_waitcnt lgkmcnt(0)\ns_barrier")
g.lgq[:] = []
for q in range(4):
    for ks in range(2): g.lg(f"ds_read_b128 {vr(40+(q*2+ks)*4,4)}, v{232+q} offset:{8192+64*ks}", f"q{q}")
for t in range(10):
    if t < 4: g.wait(lg=f"q{t}")
    d = vr(20+4*(t//4), 4)
    for ks in range(2):
        g(f"v_mfma_f32_16x16x32_bf16 {d}, {vr(40+((t%4)*2+ks)*4,4)}, {ar(160+(t*2+ks)*4,4)}, {d if (t%4 or ks) else 0}")
for a in range(3):
    g(f"v_and_or_b32 v{20+4*a}, v{20+4*a}, s54, v19\nbuffer_store_dword v{20+4*a}, v{237 if a==2 else 236}, {srd(sWS)}, s{46+a} offen sc1")
TS("ypub", True)
g("s_branch L_fin")
g("L_fz:")
g.vmq[:] = []
g("s_add_u32 s46, s44, 5\ns_add_u32 s47, s44, 10")
mod_src(44); tile_dma(0, sWM, 4, 50, 8*7680, "u0")
svc_silu(20)
mod_src(46); tile_dma(1, sWM, 4, 50, 8*7680, "u1")
g.wait(vm="u0"); g("s_barrier")
mod_consume(0, 44)
g(f"s_cmp_lt_u32 s47, 40\ns_cselect_b32 s{sWM+2}, s{sWM+2}, 0")
mod_src(47); tile_dma(0, sWM, 4, 50, 8*7680, "u2")
g.wait(vm="u1"); g("s_barrier")
mod_consume(1, 46)
g("s_cmp_lt_u32 s47, 40\ns_cbranch_scc0 L_fz_u\ns_waitcnt vmcnt(1)\ns_barrier")
mod_consume(0, 47)
g(f"L_fz_u:\nbuffer_load_dword v191, v12, {srd(sOUT)}, 0 offen\ns_mov_b32 s55, 2621184\nbuffer_load_dword v192, v12, {srd(sOUT)}, s55 offen")
TS("t0", True)
g.vmq[:] = []
g(f"""s_sub_u32 s46, s44, 27
s_lshl_b32 s46, s46, 2
s_add_u32 s46, s46, s3
v_cmp_gt_u32 vcc, 32, v1
v_lshlrev_b32 v14, 3, v1
v_and_b32 v15, 7, v1
v_cndmask_b32 v16, v255, v8, vcc
v_cndmask_b32 v250, 0, -1, vcc
v_lshlrev_b32 v15, 4, v15
s_mov_b32 s55, {MOD2+2560}
s_lshl_b32 s56, s46, 7
s_add_u32 s56, s56, {MOD2+3*2560}
s_mov_b32 s57, 0x05040100
buffer_load_dwordx2 v[44:45], v14, {srd(sWR)}, 0 offen
buffer_load_dwordx2 v[46:47], v14, {srd(sWR)}, 0 offen offset:512
buffer_load_dwordx2 v[48:49], v14, {srd(sWR)}, 0 offen offset:1024
L_fz_mp:
buffer_load_dwordx4 v[20:23], v8, {srd(sWS)}, s55 offen sc1
buffer_load_dwordx4 v[24:27], v8, {srd(sWS)}, s55 offen offset:1024 sc1
buffer_load_dwordx4 v[28:31], v16, {srd(sWS)}, s55 offen offset:2048 sc1
buffer_load_dwordx4 v[56:59], v15, {srd(sWS)}, s56 offen sc1
s_waitcnt vmcnt(0)""")
for n, b in enumerate((28, 20, 24, 56)):
    g(f"v_perm_b32 v32, v{b+1}, v{b}, s57\nv_perm_b32 v33, v{b+3}, v{b+2}, s57\nv_xor_b32 v32, s{sTAG}, v32\nv_xor_b32 v33, s{sTAG}, v33")
    g("v_or_b32 v34, v32, v33\nv_and_b32 v34, v34, v250" if n == 0 else "v_or3_b32 v34, v34, v32, v33")
g("v_cmp_ne_u32 vcc, 0, v34\ns_sleep 4")
spin("L_fz_mp", "L_fz_mok")
g("L_fz_mok:\nv_mov_b32 v60, 0")
for k in range(4): g(f"v_and_b32 v{56+k}, 0xffff0000, v{56+k}")
for k in range(12):
    g(f"v_and_b32 v{20+k}, 0xffff0000, v{20+k}")
    g(f"v_lshlrev_b32 v32, 16, v{44+k//2}" if k % 2 == 0 else f"v_and_b32 v32, 0xffff0000, v{44+k//2}")
    g(f"v_fmac_f32 v60, v{20+k}, v32")
for r in (8, 4, 2, 1): g(f"v_add_f32_dpp v60, v60, v60 row_ror:{r} {DPP}")
g("v_mov_b32 v61, v60\nv_permlane16_swap_b32 v60, v61\nv_add_f32 v60, v60, v61\nv_mov_b32 v61, v60\nv_permlane32_swap_b32 v60, v61\nv_add_f32 v60, v60, v61")
g(f"""v_cmp_gt_u32 vcc, 24, v1
s_mul_i32 s47, s46, 86
s_lshr_b32 s47, s47, 8
v_cndmask_b32 v17, v255, v8, vcc
v_cndmask_b32 v250, 0, -1, vcc
s_lshl_b32 s48, s46, 12
s_add_u32 s48, s48, {YP}
v_mov_b32 v18, 0""")
assert all((f*86 >> 8) == f//3 for f in range(20))
g(f"s_and_b32 s60, s{sTAG}, 0xff\ns_bfe_u32 s61, s{sTAG}, 0x80008\ns_bfe_u32 s62, s{sTAG}, 0x80010\ns_lshr_b32 s63, s{sTAG}, 24")
for k in range(4): g(f"v_and_b32 v{64+k}, s{60+k}, v250")
g(f"""v_lshrrev_b32 v70, 3, v1
v_lshl_add_u32 v71, v70, 12, v15
v_lshlrev_b32 v70, 2, v70
v_lshrrev_b32 v77, 1, v15
s_add_u32 s51, s46, s47
s_lshl_b32 s51, s51, 7
s_add_u32 s51, s51, {CBASE}
s_add_u32 s52, s51, 32768
s_add_u32 s53, s51, 65536
s_add_u32 s54, s51, 98304""")
TS("ready", True)
cand_poll("L_f")
TS("cand", True)
g(f"""v_readlane_b32 s50, v21, s45
s_lshl_b32 s55, s45, 12
s_add_u32 s55, s55, s51""")
for n in range(4): g(f"ds_bpermute_b32 v{72+n}, v70, v21 offset:{32*n}")
g(f"""v_add_f32 v60, v60, v24
v_cvt_pk_bf16_f32 v60, v60, v60
v_lshlrev_b32 v60, 16, v60
v_mul_f32 v60, 0xbfb8aa3b, v60
v_exp_f32 v60, v60
s_and_b32 s50, s50, 2047
s_mul_i32 s50, s50, 1280
v_add_f32 v60, 1.0, v60
v_rcp_f32 v60, v60
s_lshl_b32 s57, s46, 6
s_add_u32 s50, s50, s57
s_lshl_b32 s58, s45, 2
v_mul_f32 v56, v56, v60
v_mul_f32 v57, v57, v60
v_mul_f32 v58, v58, v60
v_mul_f32 v59, v59, v60
s_mov_b32 s59, 1280
s_waitcnt lgkmcnt(0)""")
for n in range(4):
    g(f"v_and_b32 v{72+n}, 2047, v{72+n}\nv_add_u32 v76, {32*n}, v70\nv_cmp_eq_u32 vcc, s58, v76\nv_mad_u32_u24 v{72+n}, v{72+n}, s59, v77\nv_cndmask_b32 v{72+n}, v{72+n}, v255, vcc")
g(f"L_fz_bp:\nbuffer_load_dwordx4 v[52:55], v15, {srd(sWS)}, s55 offen sc1")
for n in range(4): g(f"buffer_load_dwordx4 {vr(80+4*n,4)}, v71, {srd(sWS)}, s{(51,52,53,54)[n]} offen sc1")
g("s_waitcnt vmcnt(0)")
R_ = list(range(52, 56)) + list(range(80, 96))
for r in R_: g(f"v_xor_b32 v{r}, s{60+r%4}, v{r}")
g(f"v_or_b32 v32, v{R_[0]}, v{R_[1]}")
for k in range(1, 10): g(f"v_or3_b32 v32, v32, v{R_[2*k]}, v{R_[2*k+1]}")
g("v_and_b32 v32, 0xff, v32\nv_cmp_ne_u32 vcc, 0, v32")
spin("L_fz_bp", "L_fz_bok")
g("L_fz_bok:")
for n in range(4):
    b = 80 + 4*n
    g(f"v_cvt_pk_bf16_f32 v{b}, v{b}, v{b+1}\nv_cvt_pk_bf16_f32 v{b+1}, v{b+2}, v{b+3}\nbuffer_store_dwordx2 {vr(b,2)}, v{72+n}, {srd(sOUT)}, s57 offen sc1")
g(f"""s_cmp_eq_u32 s46, 0
s_cbranch_scc0 L_fz_e
s_add_u32 s55, s{sE}, 1
v_mov_b32 v22, s55
s_mov_b64 exec, 1
buffer_store_dword v22, v18, {srd(sWS)}, 0 offen sc1
s_mov_b64 exec, -1
L_fz_e:""")
TS("row", True)
if P["ysp"] >= 0:
    g(f"v_min_u32 v68, 26, v1\nv_lshlrev_b32 v68, 7, v68\ns_mov_b32 s57, {YS}")
    ppoll("L_ys", 1, lambda j: [f"buffer_load_dword v69, v68, {srd(sWS)}, s57 offen sc1"], lambda j: g(f"v_cmp_ne_u32 vcc, s{sTAG}, v69"), 0)
    TS("t1", True)
def y_check(j):
    for k in range(16): g(f"v_xor_b32 v{20+k}, {'s%d' % (60+k%4) if k < 12 else 'v%d' % (64+k%4)}, v{100+16*j+k}")
    g("v_or3_b32 v36, v20, v21, v22\nv_or3_b32 v37, v23, v24, v25")
    for k in range(5): g(f"v_or3_b32 v{36+(k&1)}, v{36+(k&1)}, v{26+2*k}, v{27+2*k}")
    g("v_or_b32 v36, v36, v37\nv_and_b32 v36, 0xff, v36\nv_cmp_ne_u32 vcc, 0, v36")
ppoll("L_fy", P["yR"], lambda j: [f"buffer_load_dwordx4 {vr(100+16*j+4*n,4)}, v{17 if n==3 else 8}, {srd(sWS)}, s48 offen offset:{1024*n} sc1" for n in range(4)], y_check, P["yP"])
TS("ypub", True)
g("v_pk_add_f32 v[20:21], v[20:21], v[24:25]\nv_pk_add_f32 v[22:23], v[22:23], v[26:27]\nv_pk_add_f32 v[28:29], v[28:29], v[32:33]\nv_pk_add_f32 v[30:31], v[30:31], v[34:35]\nv_pk_add_f32 v[20:21], v[20:21], v[28:29]\nv_pk_add_f32 v[22:23], v[22:23], v[30:31]")
for k in range(4): g(f"v_add_f32_dpp v{20+k}, v{20+k}, v{20+k} row_ror:8 {DPP}")
for sw in (16, 32):
    for k in range(4): g(f"v_mov_b32 v{24+k}, v{20+k}")
    for k in range(4): g(f"v_permlane{sw}_swap_b32 v{20+k}, v{24+k}")
    g("v_pk_add_f32 v[20:21], v[20:21], v[24:25]\nv_pk_add_f32 v[22:23], v[22:23], v[26:27]")
g(f"""v_pk_fma_f32 v[20:21], v[20:21], v[56:57], v[52:53]
v_pk_fma_f32 v[22:23], v[22:23], v[58:59], v[54:55]
v_cvt_pk_bf16_f32 v20, v20, v21
v_cvt_pk_bf16_f32 v21, v22, v23
s_mov_b64 exec, 0xff
buffer_store_dwordx2 v[20:21], v14, {srd(sOUT)}, s50 offen{" sc1" if P["fsc1"] else ""}
s_mov_b64 exec, -1""")
TS("stored", True)
g("L_fin:")
if P["probe"] >= 0:
    n = P["probe"]
    g(f"s_cmp_ge_u32 s2, 224\ns_cbranch_scc1 L_end" if P["pwg"] < 0 else f"s_cmp_lg_u32 s2, {P['pwg']}\ns_cbranch_scc1 L_end")
    g(f"s_waitcnt lgkmcnt(0)\ns_sub_u32 s55, s{64+2*n}, s64\ns_lshl_b32 s55, s55, 1\ns_add_u32 s55, s55, 5000\nL_pr:\ns_memrealtime s[56:57]\ns_waitcnt lgkmcnt(0)\ns_sub_u32 s56, s56, s64\ns_cmp_lt_u32 s56, s55\ns_cbranch_scc1 L_pr")
elif DEV:
    g("s_waitcnt vmcnt(0)")
    TS("fin")
    g(f"s_waitcnt lgkmcnt(0)\ns_lshl_b32 s55, s2, 2\ns_add_u32 s55, s55, s3\ns_lshl_b32 s55, s55, 7\ns_add_u32 s55, s55, {TSB}\nv_mov_b32 v20, 0")
    for n in range(16): g(f"v_writelane_b32 v20, s{64+2*n}, {n}")
    g(f"v_writelane_b32 v20, s{sSPIN}, 16\nv_lshlrev_b32 v21, 2, v1\ns_mov_b64 exec, 0x1ffff\nbuffer_store_dword v20, v21, {srd(sWS)}, s55 offen")
g("L_end:\ns_endpgm")

lines, added = pad_hazards(g.l)
HDR = open("/code/" + NAME + ".s.ref").read().split("; Override launch")[0]
txt = HDR + f"""; generated by dev/gen.py {' '.join(sys.argv[2:])}
; stamps: {' '.join(SETS[P['ts']])}
; @launch grid=(256,1,1) block=(256,1,1) lds=163840
.amdgcn_target "amdgcn-amd-amdhsa--gfx950"
.text
.globl {NAME}_kernel
.p2align 12
.type {NAME}_kernel,@function
{NAME}_kernel:
""" + "\n".join(lines) + f"""
.fill ({NAME}_kernel + 49664 - .) / 4, 4, 0xbf800000
.section .rodata,"a"
.p2align 6
.amdhsa_kernel {NAME}_kernel
  .amdhsa_next_free_vgpr 512
  .amdhsa_next_free_sgpr 102
  .amdhsa_accum_offset 256
  .amdhsa_group_segment_fixed_size 0
  .amdhsa_kernarg_size 104
  .amdhsa_user_sgpr_count 2
  .amdhsa_user_sgpr_kernarg_segment_ptr 1
  .amdhsa_system_sgpr_workgroup_id_x 1
  .amdhsa_float_denorm_mode_32 3
  .amdhsa_float_denorm_mode_16_64 3
.end_amdhsa_kernel
"""
open(sys.argv[1], "w").write(txt)
print(f"{len(lines)} lines, {added} pad states")
```
